```python
import torch

def _softmax(x, axis=-1):
    return torch.softmax(x, dim=axis)
def _gelu(x):
    return torch.nn.functional.gelu(x, approximate="tanh")
def _silu(x):
    return torch.nn.functional.silu(x)
def _sigmoid(x):
    return torch.sigmoid(x)
def _layernorm(x, axis=-1, eps=1e-5):
    m = x.mean(dim=axis, keepdim=True)
    v = x.var(dim=axis, keepdim=True, unbiased=False)
    return (x - m) / torch.sqrt(v + eps)
def _scatter_add(tgt, idx, src, axis=0):
    return tgt.clone().index_add_(axis, idx, src)
def _segment_sum(src, seg, n):
    out = torch.zeros((n,) + src.shape[1:], dtype=src.dtype)
    return out.index_add_(0, seg, src)
def _pad(x, pw):
    flat = tuple(v for pair in reversed(pw) for v in pair)
    return torch.nn.functional.pad(x, flat)

kernel_name = 'standalone__dense_activation_gelu__prompt'

def setup_inputs():

    _w = (lambda a: (lambda t: t.to(torch.bfloat16) if t.is_floating_point() else t)(torch.as_tensor(a)))
    B, S, D, F = 1, 2048, 1024, 3584
    return {
        "x": _w((lambda *s: torch.randn(*s, dtype=torch.bfloat16) * 0.05)(B, S, D)),
        "w1": _w((lambda *s: torch.randn(*s, dtype=torch.bfloat16) * 3.2)(D, F) * (D ** -0.5)),
        "b1": _w((lambda *s: torch.randn(*s, dtype=torch.bfloat16) * 3.2)(F) * 0.01),
        "w2": _w((lambda *s: torch.randn(*s, dtype=torch.bfloat16) * 0.05)(F, D) * (F ** -0.5)),
        "b2": _w((lambda *s: torch.randn(*s, dtype=torch.bfloat16) * 0.1)(D) * 0.01),
    }

def reference(x, w1, b1, w2, b2):
    h = torch.einsum("bsd,df->bsf", x, w1) + b1
    h = _gelu(h)
    return torch.einsum("bsf,fd->bsd", h, w2) + b2
```

```python
import sys, argparse

S, D, F = 2048, 1024, 3584
X_BYTES = S * D * 2
W1_BYTES = D * F * 2
W2_BYTES = F * D * 2
H_BYTES = S * F * 2
OUT_BYTES = S * D * 2

class Asm:
    def __init__(self):
        self.L = []
    def __call__(self, s):
        self.L.append("    " + s)
    def label(self, s):
        self.L.append(s + ":")
    def raw(self, s):
        self.L.append(s)
    def text(self):
        return "\n".join(self.L) + "\n"

def vr(b, n):
    return f"v[{b}:{b+n-1}]" if n > 1 else f"v{b}"
def sr(b, n):
    return f"s[{b}:{b+n-1}]" if n > 1 else f"s{b}"

def srd(a, dst, ptr, nbytes):
    a(f"s_mov_b32 s{dst}, s{ptr}")
    a(f"s_and_b32 s{dst+1}, s{ptr+1}, 0xffff")
    a(f"s_mov_b32 s{dst+2}, {nbytes}")
    a(f"s_mov_b32 s{dst+3}, 0x20000")

class VmQ:
    def __init__(self, a):
        self.a = a; self.n = 0; self.tags = {}; self.done = 0
    def issue(self, tag=None):
        self.n += 1
        if tag is not None: self.tags[tag] = self.n
        assert self.n - self.done <= 63, "too many outstanding"
    def wait(self, tag):
        idx = self.tags[tag]
        if idx <= self.done: return
        cnt = self.n - idx
        self.a(f"s_waitcnt vmcnt({cnt})")
        self.done = idx

import struct
def f32(x): return "0x%08x" % struct.unpack("<I", struct.pack("<f", x))[0]

def gen_k1(a, P):
    NST = 16
    NB = 3
    A_ST = 16384; B_ST = 28672
    B_BASE = NB * A_ST
    a.raw(".p2align 8")
    a.raw(".type k1_kernel,@function")
    a.label("k1_kernel")
    a("s_cmp_ge_u32 s2, 256")
    a("s_cbranch_scc1 K1_END")
    a("s_load_dwordx4 s[4:7], s[0:1], 0")
    a("s_load_dwordx4 s[8:11], s[0:1], 16")
    a("s_load_dwordx2 s[12:13], s[0:1], 56")
    a("v_lshrrev_b32 v1, 6, v0")
    a("v_and_b32 v2, 63, v0")
    a("v_readfirstlane_b32 s3, v1")
    a("s_and_b32 s14, s2, 7")
    a("s_lshr_b32 s15, s2, 3")
    if P.k1map == "8x4":
        a("s_and_b32 s16, s14, 1"); a("s_lshl_b32 s16, s16, 3"); a("s_and_b32 s17, s15, 7"); a("s_add_u32 s16, s16, s17")
        a("s_lshr_b32 s17, s14, 1"); a("s_lshl_b32 s17, s17, 2"); a("s_lshr_b32 s18, s15, 3"); a("s_add_u32 s17, s17, s18")
    elif P.k1map == "4x8":
        a("s_lshr_b32 s16, s14, 1"); a("s_lshl_b32 s16, s16, 2"); a("s_and_b32 s17, s15, 3"); a("s_add_u32 s16, s16, s17")
        a("s_and_b32 s17, s14, 1"); a("s_lshl_b32 s17, s17, 3"); a("s_lshr_b32 s18, s15, 2"); a("s_add_u32 s17, s17, s18")
    a("s_waitcnt lgkmcnt(0)")
    srd(a, 20, 4, X_BYTES)
    srd(a, 24, 6, W1_BYTES)
    srd(a, 28, 8, F * 2)
    srd(a, 32, 12, H_BYTES)
    srd(a, 36, 10, W2_BYTES)
    a("s_cmp_eq_u32 s3, 4"); a("s_cbranch_scc1 K1_LOADA")
    a("s_cmp_eq_u32 s3, 7"); a("s_cbranch_scc1 K1_TOUCH")
    a("s_cmp_gt_u32 s3, 4"); a("s_cbranch_scc1 K1_LOADB")
    ACC = 128
    XF = [32, 76]; WF = [48, 92]
    XA = 4
    WB = 6
    a("s_and_b32 s40, s3, 1")
    a("s_lshr_b32 s41, s3, 1")
    a("v_and_b32 v12, 15, v2")
    a("v_lshrrev_b32 v13, 4, v2")
    a("s_mul_i32 s42, s17, 448"); a("s_mul_i32 s43, s41, 224"); a("s_add_u32 s42, s42, s43")
    a("v_lshlrev_b32 v14, 3, v13")
    for nt in range(7):
        a(f"buffer_load_dwordx2 {vr(XF[1] + nt*2, 2)}, v14, s[28:31], s42 offen offset:{nt*32}")
    a("v_and_b32 v15, 7, v12")
    a("v_xor_b32 v15, v15, v13")
    a("v_lshlrev_b32 v15, 4, v15")
    a("v_lshl_add_u32 v15, v12, 7, v15")
    a("s_lshl_b32 s43, s40, 13")
    a(f"v_add_u32 v{XA}, s43, v15")
    a(f"v_xor_b32 v{XA+1}, 64, v{XA}")
    a("v_mul_u32_u24 v15, 3584, v13")
    a("v_bfe_u32 v16, v2, 2, 2"); a("v_lshl_add_u32 v15, v16, 6, v15")
    a("v_and_b32 v16, 1, v2"); a("v_lshl_add_u32 v15, v16, 3, v15")
    a("v_bfe_u32 v16, v2, 1, 1"); a("v_lshl_add_u32 v15, v16, 4, v15")
    a("v_and_b32 v16, 1, v13")
    a("v_xor_b32 v16, s41, v16")
    a("v_lshl_add_u32 v17, v16, 5, v15")
    a("v_xor_b32 v18, 32, v17")
    a("s_mul_i32 s43, s41, 768"); a("s_lshl_b32 s44, s41, 10")
    for st in range(NB):
        a(f"s_add_u32 s45, s43, {B_BASE + st*B_ST}"); a(f"v_add_u32 v{WB + st*2}, s45, v17")
        a(f"s_add_u32 s45, s44, {B_BASE + st*B_ST}"); a(f"v_add_u32 v{WB + st*2 + 1}, s45, v18")
    a("s_waitcnt vmcnt(0)")
    for nt in range(7):
        b = XF[1] + nt*2
        t = ACC + nt*16
        a(f"v_lshlrev_b32 v{t}, 16, v{b}"); a(f"v_and_b32 v{t+1}, 0xffff0000, v{b}")
        a(f"v_lshlrev_b32 v{t+2}, 16, v{b+1}"); a(f"v_and_b32 v{t+3}, 0xffff0000, v{b+1}")
        for mt in range(1, 4):
            for r in range(4):
                a(f"v_mov_b32 v{t+mt*4+r}, v{t+r}")
    def reads(t):
        s = t >> 1; ks = t & 1; buf = s % NB; fs = t & 1
        out = []
        for mt in range(4):
            out.append(f"ds_read_b128 {vr(XF[fs] + mt*4, 4)}, v{XA+ks} offset:{buf*A_ST + mt*2048}")
        for nt in range(7):
            for hf in range(2):
                out.append(f"ds_read_b64_tr_b16 {vr(WF[fs] + nt*4 + hf*2, 2)}, v{WB + buf*2 + (nt&1)} offset:{(8*ks+hf)*1792 + (nt>>1)*256}")
        return out
    a("s_barrier")
    for r in reads(0): a(r)
    T = NST * 2
    for t in range(T):
        fs = t & 1
        a("s_waitcnt lgkmcnt(0)")
        if (t & 1) and t + 1 < T:
            a("s_barrier")
        rd = reads(t + 1) if t + 1 < T else []
        i = 0
        for nt in range(7):
            for mt in range(4):
                acc = vr(ACC + (nt*4+mt)*4, 4)
                a(f"v_mfma_f32_16x16x32_bf16 {acc}, {vr(WF[fs]+nt*4, 4)}, {vr(XF[fs]+mt*4, 4)}, {acc}")
                if i < len(rd): a(rd[i]); i += 1
    c0 = -2.0 * 0.7978845608028654 * 1.4426950408889634
    c1 = c0 * 0.044715
    a(f"s_mov_b32 s46, {f32(c1)}"); a(f"s_mov_b32 s47, {f32(c0)}")
    a("s_mul_i32 s48, s16, 112"); a("s_mul_i32 s49, s17, 7"); a("s_add_u32 s48, s48, s49")
    a("s_lshl_b32 s48, s48, 13")
    a("s_lshl_b32 s49, s40, 12")
    a("s_add_u32 s48, s48, s49")
    a("v_lshlrev_b32 v14, 4, v2")
    a("s_lshl_b32 s49, s41, 3")
    a("v_add_u32 v15, s49, v14")
    a("s_add_u32 s50, s48, %d" % (3*8192))
    a("s_lshl_b32 s49, s41, 15")
    a("s_add_u32 s51, s48, s49")
    a("s_nop 7")
    TMP = 32
    def gelu4(t, dst, tmp):
        for h in range(2):
            x = vr(t + 2*h, 2); u = vr(tmp + 2*h, 2)
            a(f"v_pk_mul_f32 {u}, {x}, {x}")
        for h in range(2):
            u = vr(tmp + 2*h, 2)
            a(f"v_pk_fma_f32 {u}, {u}, s[46:47], s[46:47] op_sel:[0,0,1] op_sel_hi:[1,0,1]")
        for h in range(2):
            x = vr(t + 2*h, 2); u = vr(tmp + 2*h, 2)
            a(f"v_pk_mul_f32 {u}, {u}, {x}")
        for j in range(4): a(f"v_exp_f32 v{tmp+j}, v{tmp+j}")
        for h in range(2):
            u = vr(tmp + 2*h, 2)
            a(f"v_pk_add_f32 {u}, {u}, 1.0 op_sel_hi:[1,0]")
        for j in range(4): a(f"v_rcp_f32 v{tmp+j}, v{tmp+j}")
        for h in range(2):
            x = vr(t + 2*h, 2); u = vr(tmp + 2*h, 2)
            a(f"v_pk_mul_f32 {u}, {u}, {x}")
        for h in range(2):
            a(f"v_cvt_pk_bf16_f32 v{dst+h}, v{tmp+2*h}, v{tmp+2*h+1}")
    a("s_cmp_eq_u32 s41, 1"); a("s_cbranch_scc1 K1_EPI1")
    for wc in range(2):
        if wc == 1: a.label("K1_EPI1")
        single = 6 if wc == 0 else 0
        pairs = [(0,1),(2,3),(4,5)] if wc == 0 else [(1,2),(3,4),(5,6)]
        k = 0
        for pi, (n0, n1) in enumerate(pairs):
            for mt in range(4):
                dst = 64 + (k % 8) * 4; k += 1
                gelu4(ACC + (n0*4+mt)*4, dst, TMP)
                gelu4(ACC + (n1*4+mt)*4, dst + 2, TMP + 4)
                if pi > 0 or True:
                    a(f"s_add_u32 s52, s51, {pi*8192 + mt*1024}")
                a(f"buffer_store_dwordx4 {vr(dst,4)}, v14, s[32:35], s52 offen{P.hst}")
        for mt in range(4):
            dst = 64 + (k % 8) * 4; k += 1
            gelu4(ACC + (single*4+mt)*4, dst, TMP)
            a(f"buffer_store_dwordx2 {vr(dst,2)}, v15, s[32:35], s50 offen offset:{mt*1024}{P.hst}")
        a("s_endpgm")
    a.label("K1_LOADA")
    a("v_lshrrev_b32 v3, 3, v2")
    a("v_and_b32 v4, 7, v2"); a("v_xor_b32 v4, v4, v3"); a("v_lshlrev_b32 v4, 4, v4")
    a("v_lshl_add_u32 v4, v3, 11, v4")
    a("s_lshl_b32 s40, s16, 18")
    a("v_add_u32 v8, s40, v4")
    for j in range(1, 16): a(f"v_add_u32 v{8+j}, {j*16384}, v8")
    def loader(n, regs, srdn, kstep, ldsbase):
        q = VmQ(a)
        def issue(s):
            a(f"s_mov_b32 s41, {s*kstep}")
            for j in range(n):
                a(f"s_add_u32 m0, s42, {ldsbase(s % NB) + j*1024}")
                a("s_nop 0")
                a(f"buffer_load_dwordx4 v{regs+j}, s[{srdn}:{srdn+3}], s41 offen lds")
                q.issue(("st", s) if j == n-1 else None)
        for s in range(NB): issue(s)
        q.wait(("st", 0)); a("s_barrier")
        for s in range(NST - 1):
            q.wait(("st", s+1)); a("s_barrier")
            if s + NB < NST: issue(s + NB)
        a("s_endpgm")
    a("s_mov_b32 s42, 0")
    loader(16, 8, 20, 128, lambda b: b * A_ST)
    a.label("K1_LOADB")
    a("s_sub_u32 s40, s3, 5")
    a("s_mul_i32 s43, s40, 56")
    a("v_lshrrev_b32 v3, 4, v2")
    a("v_add_u32 v3, s43, v3")
    a("v_bfe_u32 v4, v2, 2, 2")
    a("v_and_b32 v5, 3, v2")
    a("s_mul_i32 s44, s17, 448")
    a("s_movk_i32 s45, 7168")
    for j in range(14):
        a(f"v_add_u32 v6, {4*j}, v3")
        a("v_mul_u32_u24 v7, 147, v6"); a("v_lshrrev_b32 v7, 10, v7")
        a("v_mul_u32_u24 v30, 7, v7"); a("v_sub_u32 v30, v6, v30")
        a("v_and_b32 v31, 2, v7")
        a("v_xor_b32 v31, v31, v5")
        a("v_lshl_add_u32 v31, v30, 2, v31")
        a("v_lshl_add_u32 v7, v7, 2, v4")
        a("v_mul_lo_u32 v7, v7, s45")
        a("v_lshl_add_u32 v7, v31, 4, v7")
        a(f"v_add_u32 v{8+j}, s44, v7")
    a("s_mul_i32 s42, s40, 14336")
    loader(14, 8, 24, 64 * 7168, lambda b: B_BASE + b * B_ST)
    a.label("K1_TOUCH")
    if P.touch1:
        if P.k1map == "8x4":
            xrows, wlines = 1024, 14
            a("s_and_b32 s40, s14, 1"); a("s_lshl_b32 s40, s40, 21")
            a("s_lshr_b32 s41, s14, 1"); a("s_mul_i32 s41, s41, 1792")
        else:
            xrows, wlines = 512, 28
            a("s_lshr_b32 s40, s14, 1"); a("s_lshl_b32 s40, s40, 20")
            a("s_and_b32 s41, s14, 1"); a("s_mul_i32 s41, s41, 3584")
        lpr = 64 * 32 // xrows
        sh = lpr.bit_length() - 1
        a(f"v_lshrrev_b32 v3, {sh}, v2"); a(f"v_and_b32 v4, {lpr-1}, v2")
        a(f"s_mul_i32 s42, s15, {xrows//32}")
        a("v_add_u32 v3, s42, v3"); a("v_lshlrev_b32 v3, 11, v3"); a("v_lshl_add_u32 v3, v4, 7, v3")
        a("v_add_u32 v3, s40, v3")
        nxr = 16 // lpr
        rpw = 64 // wlines
        a(f"s_movk_i32 s43, {65536//wlines + 1}")
        a("v_mul_u32_u24 v5, s43, v2"); a("v_lshrrev_b32 v5, 16, v5")
        a(f"v_mul_u32_u24 v6, {wlines}, v5"); a("v_sub_u32 v6, v2, v6")
        a(f"v_min_u32 v5, {rpw-1}, v5")
        a(f"s_mul_i32 s42, s15, {rpw}")
        a("v_add_u32 v5, s42, v5"); a("s_movk_i32 s45, 7168"); a("v_mul_lo_u32 v5, v5, s45")
        a("v_lshl_add_u32 v5, v6, 7, v5"); a("v_add_u32 v5, s41, v5")
        nwr = 1024 // (32 * rpw)
        ev = []
        for r in range(nxr): ev.append(((r + 0.5) / nxr, "x", r))
        for r in range(nwr): ev.append(((r + 0.5) / nwr, "w", r))
        ev.sort()
        k = 0
        for _, kind, r in ev:
            if kind == "x":
                if (r + 1) * lpr * 64 <= P.touch_skip: continue
                a(f"s_movk_i32 s44, {r * lpr * 128}")
                a(f"buffer_load_dword v{8+k}, v3, s[20:23], s44 offen")
            else:
                if (r + 1) * 32 * rpw <= P.touch_skip: continue
                a(f"s_mov_b32 s44, {r * 32 * rpw * 7168}")
                a(f"buffer_load_dword v{8+k}, v5, s[24:27], s44 offen")
            k += 1
        if P.touchw2:
            a("s_waitcnt vmcnt(0)")
            a("v_lshlrev_b32 v3, 7, v2")
            a("s_mul_i32 s44, s2, 8192")
            for r in range(4):
                a(f"buffer_load_dword v{8+r}, v3, s[36:39], s44 offen")
                a(f"s_add_u32 s44, s44, {256*8192}")
        a("s_waitcnt vmcnt(0)")
    a.label("K1_END")
    a("s_endpgm")
    return dict(name="k1_kernel", vgpr=240, lds=NB * (A_ST + B_ST), block=512)

def gen_k2(a, P):
    NST = 28
    NB = P.k2nb
    ST = 16384
    RED = NB * ST
    PD = P.k2pd
    a.raw(".p2align 8")
    a.raw(".type k2_kernel,@function")
    a.label("k2_kernel")
    a("s_cmp_ge_u32 s2, 256")
    a("s_cbranch_scc1 K2_END")
    a("s_load_dwordx4 s[4:7], s[0:1], 24")
    a("s_load_dwordx2 s[8:9], s[0:1], 40")
    a("s_load_dwordx2 s[12:13], s[0:1], 56")
    a("v_lshrrev_b32 v1, 6, v0")
    a("v_and_b32 v2, 63, v0")
    a("v_readfirstlane_b32 s3, v1")
    a("s_and_b32 s14, s2, 7"); a("s_lshr_b32 s15, s2, 3")
    if P.k1map == "8x4":
        a("s_and_b32 s16, s14, 1"); a("s_lshl_b32 s16, s16, 1"); a("s_bfe_u32 s17, s14, 0x10001"); a("s_add_u32 s16, s16, s17")
        a("s_lshr_b32 s18, s14, 2")
    else:
        a("s_lshr_b32 s16, s14, 1"); a("s_and_b32 s18, s14, 1")
    a("s_mov_b32 s60, s16"); a("s_mov_b32 s61, s18")
    a("s_lshl_b32 s16, s16, 2"); a("s_and_b32 s17, s15, 3"); a("s_add_u32 s16, s16, s17")
    a("s_lshl_b32 s18, s18, 3"); a("s_lshr_b32 s17, s15, 2"); a("s_add_u32 s17, s17, s18")
    a("s_waitcnt lgkmcnt(0)")
    srd(a, 20, 4, W2_BYTES)
    srd(a, 24, 12, H_BYTES)
    srd(a, 28, 6, D * 2)
    srd(a, 32, 8, OUT_BYTES)
    if P.touch2:
        a("s_cmp_eq_u32 s3, 8"); a("s_cbranch_scc1 K2_TOUCH")
    ACC = 32
    WF = [64, 80]
    HF = 96
    a("s_and_b32 s40, s3, 3")
    a("s_lshr_b32 s41, s3, 2")
    a("v_and_b32 v12, 15, v2"); a("v_lshrrev_b32 v13, 4, v2")
    a("v_lshlrev_b32 v3, 4, v2")
    a("s_mul_i32 s42, s16, %d" % (112*8192)); a("s_lshl_b32 s43, s40, 11"); a("s_add_u32 s42, s42, s43")
    a("s_lshl_b32 s43, s41, 13"); a("s_add_u32 s42, s42, s43")
    a("v_add_u32 v3, s42, v3")
    a("v_lshrrev_b32 v4, 3, v2")
    a("v_bfe_u32 v5, v2, 1, 2"); a("v_bfe_u32 v6, v2, 4, 2"); a("v_xor_b32 v5, v5, v6"); a("v_lshlrev_b32 v5, 5, v5")
    a("v_and_b32 v6, 1, v2"); a("v_lshl_add_u32 v5, v6, 4, v5")
    a("v_lshl_add_u32 v4, v4, 11, v5")
    a("s_lshl_b32 s42, s3, 15")
    a("s_lshl_b32 s43, s17, 7"); a("s_add_u32 s42, s42, s43")
    a("v_add_u32 v4, s42, v4")
    a("v_add_u32 v5, 16384, v4")
    a("s_lshl_b32 s44, s3, 11")
    a("v_bfe_u32 v6, v2, 2, 2")
    a("v_lshl_add_u32 v7, v13, 2, v6")
    a("v_lshlrev_b32 v7, 7, v7")
    a("v_and_b32 v8, 3, v2"); a("v_lshl_add_u32 v7, v8, 3, v7")
    a("v_bfe_u32 v8, v2, 3, 2")
    a("s_lshl_b32 s45, s41, 12")
    a("v_add_u32 v7, s45, v7")
    NBASE = (NB * ST + 65535) // 65536
    WB = 16
    for nt in range(4):
        a(f"v_xor_b32 v9, {nt}, v8"); a(f"v_lshl_add_u32 v{WB+nt}, v9, 5, v7")
        for w in range(1, NBASE):
            a(f"v_add_u32 v{WB+w*4+nt}, {w*65536}, v{WB+nt}")
    assert WB + NBASE*4 <= ACC
    q = VmQ(a)
    def dma(s):
        a(f"s_mov_b32 s46, {s*128*2048}")
        for j in range(2):
            a(f"s_add_u32 m0, s44, {(s % NB)*ST + j*1024}")
            a("s_nop 0")
            return_ = f"buffer_load_dwordx4 v{4+j}, s[20:23], s46 offen lds"
            a(return_)
            q.issue(("w", s) if j == 1 else None)
    def hload(u):
        a(f"s_mov_b32 s47, {u*16384}")
        for mt in range(2):
            a(f"buffer_load_dwordx4 {vr(HF + (u % PD)*8 + mt*4, 4)}, v3, s[24:27], s47 offen offset:{mt*1024}")
            q.issue(("h", u) if mt == 1 else None)
    def reads(u):
        s = u >> 1; j = u & 1; fs = u & 1
        base = (s % NB) * ST + j * 64 * 128
        out = []
        for nt in range(4):
            for hf in range(2):
                off = base + hf * 2048
                out.append(f"ds_read_b64_tr_b16 {vr(WF[fs] + nt*4 + hf*2, 2)}, v{WB + (off >> 16)*4 + nt} offset:{off & 65535}")
        return out
    U = NST * 2
    dma(0); hload(0); hload(1)
    nd = 1; nh = 2
    while nd < NB or nh < PD:
        if nd < NB: dma(nd); nd += 1
        for _ in range(2):
            if nh < PD: hload(nh); nh += 1
    for i in range(32): a(f"v_mov_b32 v{ACC+i}, 0")
    q.wait(("w", 0)); a("s_barrier")
    for r in reads(0): a(r)
    for u in range(U):
        fs = u & 1; s = u >> 1
        a("s_waitcnt lgkmcnt(0)")
        if (u & 1) and u + 1 < U:
            q.wait(("w", s + 1)); a("s_barrier")
        q.wait(("h", u))
        rd = reads(u + 1) if u + 1 < U else []
        i = 0
        for nt in range(4):
            for mt in range(2):
                acc = vr(ACC + (nt*2+mt)*4, 4)
                a(f"v_mfma_f32_16x16x32_bf16 {acc}, {vr(WF[fs]+nt*4, 4)}, {vr(HF + (u % PD)*8 + mt*4, 4)}, {acc}")
                if i < len(rd): a(rd[i]); i += 1
        if (u & 1) and s + NB < NST: dma(s + NB)
        if u + PD < U: hload(u + PD)
    a("s_lshl_b32 s42, s17, 7")
    a("v_lshlrev_b32 v14, 3, v13")
    for nt in range(4):
        a(f"buffer_load_dwordx2 {vr(WF[0] + nt*2, 2)}, v14, s[28:31], s42 offen offset:{nt*32}")
    a("v_lshlrev_b32 v15, 4, v2")
    a("s_lshl_b32 s43, s3, 12"); a(f"s_add_u32 s43, s43, {RED}")
    a("v_add_u32 v10, s43, v15")
    a("v_xor_b32 v11, 16384, v10")
    a("s_nop 4")
    a("s_cmp_eq_u32 s41, 1"); a("s_cbranch_scc1 K2_RED1")
    for kp in range(2):
        if kp == 1: a.label("K2_RED1")
        for nt in range(4):
            a(f"ds_write_b128 v10, {vr(ACC + (nt*2 + (1-kp))*4, 4)} offset:{nt*1024}")
        a("s_waitcnt lgkmcnt(0)")
        a("s_barrier")
        for nt in range(4):
            a(f"ds_read_b128 {vr(HF + nt*4, 4)}, v11 offset:{nt*1024}")
        a("s_lshl_b32 s42, s16, 7"); a("s_lshl_b32 s43, s40, 5"); a("s_add_u32 s42, s42, s43"); a(f"s_add_u32 s42, s42, {kp*16}")
        a("s_lshl_b32 s42, s42, 11"); a("s_lshl_b32 s43, s17, 7"); a("s_add_u32 s42, s42, s43")
        a("v_lshl_add_u32 v15, v12, 11, v14")
        a("s_waitcnt vmcnt(0) lgkmcnt(0)")
        for nt in range(4):
            t = ACC + (nt*2 + kp)*4; p = HF + nt*4; b = WF[0] + nt*2; tb = WF[1]
            a(f"v_lshlrev_b32 v{tb}, 16, v{b}"); a(f"v_and_b32 v{tb+1}, 0xffff0000, v{b}")
            a(f"v_lshlrev_b32 v{tb+2}, 16, v{b+1}"); a(f"v_and_b32 v{tb+3}, 0xffff0000, v{b+1}")
            for r in range(4):
                a(f"v_add_f32 v{t+r}, v{t+r}, v{p+r}")
            for r in range(4):
                a(f"v_add_f32 v{t+r}, v{t+r}, v{tb+r}")
            a(f"v_cvt_pk_bf16_f32 v{p}, v{t}, v{t+1}"); a(f"v_cvt_pk_bf16_f32 v{p+1}, v{t+2}, v{t+3}")
            a(f"buffer_store_dwordx2 {vr(p,2)}, v15, s[32:35], s42 offen offset:{nt*32}")
        a("s_endpgm")
    nwaves = 8
    if P.touch2:
        nwaves = 9
        a.label("K2_TOUCH")
        a("v_lshlrev_b32 v3, 7, v2")
        a("s_mul_i32 s42, s16, %d" % (112*8192)); a("s_lshr_b32 s43, s15, 2"); a("s_lshl_b32 s43, s43, 13"); a("s_add_u32 s42, s42, s43")
        a("v_add_u32 v3, s42, v3")
        a("v_lshrrev_b32 v4, 3, v2"); a("v_and_b32 v5, 7, v2"); a("v_lshlrev_b32 v5, 7, v5"); a("v_lshl_add_u32 v4, v4, 11, v5")
        a("s_lshl_b32 s42, s15, 14"); a("s_lshl_b32 s43, s61, 10"); a("s_add_u32 s42, s42, s43")
        a("v_add_u32 v4, s42, v4")
        LEAD = P.k2lead
        def touch(sp):
            a(f"s_mov_b32 s46, {sp*65536}"); a(f"buffer_load_dword v{8 + (sp%8)*2}, v3, s[24:27], s46 offen")
            a(f"s_mov_b32 s47, {sp*256*2048}"); a(f"buffer_load_dword v{9 + (sp%8)*2}, v4, s[20:23], s47 offen")
        for sp in range(P.k2skip, LEAD): touch(sp)
        a("s_barrier")
        sp = LEAD
        for s in range(NST - 1):
            if sp >= 14: break
            a("s_barrier")
            if s & 1: touch(sp); sp += 1
        a("s_waitcnt vmcnt(0)")
    a.label("K2_END")
    a("s_endpgm")
    return dict(name="k2_kernel", vgpr=(HF + PD*8 + 7)//8*8, lds=RED + 32768, block=nwaves*64)

def main():
    ap = argparse.ArgumentParser()
    ap.add_argument("-o", default="mlp.s")
    ap.add_argument("--k1map", default="8x4")
    ap.add_argument("--hst", default="")
    ap.add_argument("--touch1", type=int, default=1)
    ap.add_argument("--touch_skip", type=int, default=128)
    ap.add_argument("--touchw2", type=int, default=1)
    ap.add_argument("--touch2", type=int, default=1)
    ap.add_argument("--k2nb", type=int, default=6)
    ap.add_argument("--k2pd", type=int, default=8)
    ap.add_argument("--k2lead", type=int, default=5)
    ap.add_argument("--k2skip", type=int, default=2)
    ap.add_argument("--only", default="")
    P = ap.parse_args()
    if P.hst: P.hst = " " + P.hst.replace("+", " ")
    a = Asm()
    ks = [gen_k1(a, P), gen_k2(a, P)]
    hdr = []
    for k in ks:
        if P.only and k["name"] != P.only: continue
        hdr.append(f"; @launch kernel={k['name']} grid=(256,1,1) block=({k['block']},1,1) lds={k['lds']}")
    hdr.append('.amdgcn_target "amdgcn-amd-amdhsa--gfx950"')
    hdr.append(".text")
    for k in ks: hdr.append(f".globl {k['name']}")
    tail = ['.section .rodata,"a"']
    for k in ks:
        tail += [".p2align 6", f".amdhsa_kernel {k['name']}",
                 f"  .amdhsa_next_free_vgpr {k['vgpr']}", "  .amdhsa_next_free_sgpr 102",
                 f"  .amdhsa_accum_offset {k['vgpr']}", "  .amdhsa_group_segment_fixed_size 0",
                 "  .amdhsa_kernarg_size 64", "  .amdhsa_user_sgpr_count 2",
                 "  .amdhsa_user_sgpr_kernarg_segment_ptr 1", "  .amdhsa_system_sgpr_workgroup_id_x 1",
                 ".end_amdhsa_kernel"]
    open(P.o, "w").write("\n".join(hdr) + "\n" + a.text() + "\n".join(tail) + "\n")

if __name__ == "__main__":
    main()
```

```python
import sys, argparse

S, D, F = 2048, 1024, 3584
X_BYTES = S * D * 2
W1_BYTES = D * F * 2
W2_BYTES = F * D * 2
H_BYTES = S * F * 2
OUT_BYTES = S * D * 2

class Asm:
    def __init__(self):
        self.L = []
    def __call__(self, s):
        self.L.append("    " + s)
    def label(self, s):
        self.L.append(s + ":")
    def raw(self, s):
        self.L.append(s)
    def text(self):
        return "\n".join(self.L) + "\n"

def vr(b, n):
    return f"v[{b}:{b+n-1}]" if n > 1 else f"v{b}"
def sr(b, n):
    return f"s[{b}:{b+n-1}]" if n > 1 else f"s{b}"

def srd(a, dst, ptr, nbytes):
    a(f"s_mov_b32 s{dst}, s{ptr}")
    a(f"s_and_b32 s{dst+1}, s{ptr+1}, 0xffff")
    a(f"s_mov_b32 s{dst+2}, {nbytes}")
    a(f"s_mov_b32 s{dst+3}, 0x20000")

class VmQ:
    def __init__(self, a):
        self.a = a; self.n = 0; self.tags = {}; self.done = 0
    def issue(self, tag=None):
        self.n += 1
        if tag is not None: self.tags[tag] = self.n
        assert self.n - self.done <= 63, "too many outstanding"
    def wait(self, tag):
        idx = self.tags[tag]
        if idx <= self.done: return
        cnt = self.n - idx
        self.a(f"s_waitcnt vmcnt({cnt})")
        self.done = idx

PROF_BASE = 64 << 20
class Prof:
    def __init__(self, a, on, kidx, wsreg):
        self.a = a; self.on = on; self.kidx = kidx; self.ws = wsreg
    def stamp(self, i):
        if self.on:
            self.a(f"s_memtime s[{70+2*i}:{71+2*i}]")
    def rt(self, i):
        if self.on:
            self.a(f"s_memrealtime s[{70+2*i}:{71+2*i}]")
    def dump(self):
        if not self.on: return
        a = self.a
        a("s_waitcnt vmcnt(0)")
        a("s_memtime s[84:85]"); a("s_memrealtime s[86:87]")
        a("s_waitcnt lgkmcnt(0)")
        a(f"s_mov_b32 s92, s{self.ws}"); a(f"s_and_b32 s93, s{self.ws+1}, 0xffff"); a("s_mov_b32 s94, 0x10000000"); a("s_mov_b32 s95, 0x20000")
        a("s_lshl_b32 s90, s2, 4"); a("s_add_u32 s90, s90, s3"); a("s_lshl_b32 s90, s90, 6")
        a(f"s_add_u32 s90, s90, {PROF_BASE + self.kidx * (1 << 20)}")
        a("v_mov_b32 v1, 0")
        for i in range(9):
            a(f"v_mov_b32 v0, s{70+2*i}")
            a(f"buffer_store_dword v0, v1, s[92:95], s90 offen offset:{4*i}")
        a("s_waitcnt vmcnt(0)")

import struct
def f32(x): return "0x%08x" % struct.unpack("<I", struct.pack("<f", x))[0]

def gen_k1(a, P):
    NST = 16
    NB = 3
    A_ST = 16384; B_ST = 28672
    B_BASE = NB * A_ST
    a.raw(".p2align 8")
    a.raw(".type k1_kernel,@function")
    a.label("k1_kernel")
    a("s_cmp_ge_u32 s2, 256")
    a("s_cbranch_scc1 K1_END")
    pf = Prof(a, P.prof, 0, 12)
    pf.rt(0); pf.stamp(1)
    a("s_load_dwordx4 s[4:7], s[0:1], 0")
    a("s_load_dwordx4 s[8:11], s[0:1], 16")
    a("s_load_dwordx2 s[12:13], s[0:1], 56")
    a("v_lshrrev_b32 v1, 6, v0")
    a("v_and_b32 v2, 63, v0")
    a("v_readfirstlane_b32 s3, v1")
    a("s_and_b32 s14, s2, 7")
    a("s_lshr_b32 s15, s2, 3")
    if P.k1map == "8x4":
        a("s_and_b32 s16, s14, 1"); a("s_lshl_b32 s16, s16, 3"); a("s_and_b32 s17, s15, 7"); a("s_add_u32 s16, s16, s17")
        a("s_lshr_b32 s17, s14, 1"); a("s_lshl_b32 s17, s17, 2"); a("s_lshr_b32 s18, s15, 3"); a("s_add_u32 s17, s17, s18")
    elif P.k1map == "4x8":
        a("s_lshr_b32 s16, s14, 1"); a("s_lshl_b32 s16, s16, 2"); a("s_and_b32 s17, s15, 3"); a("s_add_u32 s16, s16, s17")
        a("s_and_b32 s17, s14, 1"); a("s_lshl_b32 s17, s17, 3"); a("s_lshr_b32 s18, s15, 2"); a("s_add_u32 s17, s17, s18")
    a("s_waitcnt lgkmcnt(0)")
    srd(a, 20, 4, X_BYTES)
    srd(a, 24, 6, W1_BYTES)
    srd(a, 28, 8, F * 2)
    srd(a, 32, 12, H_BYTES)
    srd(a, 36, 10, W2_BYTES)
    a("s_cmp_eq_u32 s3, 4"); a("s_cbranch_scc1 K1_LOADA")
    a("s_cmp_eq_u32 s3, 7"); a("s_cbranch_scc1 K1_TOUCH")
    a("s_cmp_gt_u32 s3, 4"); a("s_cbranch_scc1 K1_LOADB")
    ACC = 128
    XF = [32, 76]; WF = [48, 92]
    XA = 4
    WB = 6
    a("s_and_b32 s40, s3, 1")
    a("s_lshr_b32 s41, s3, 1")
    a("v_and_b32 v12, 15, v2")
    a("v_lshrrev_b32 v13, 4, v2")
    a("s_mul_i32 s42, s17, 448"); a("s_mul_i32 s43, s41, 224"); a("s_add_u32 s42, s42, s43")
    a("v_lshlrev_b32 v14, 3, v13")
    for nt in range(7):
        a(f"buffer_load_dwordx2 {vr(XF[1] + nt*2, 2)}, v14, s[28:31], s42 offen offset:{nt*32}")
    a("v_and_b32 v15, 7, v12")
    a("v_xor_b32 v15, v15, v13")
    a("v_lshlrev_b32 v15, 4, v15")
    a("v_lshl_add_u32 v15, v12, 7, v15")
    a("s_lshl_b32 s43, s40, 13")
    a(f"v_add_u32 v{XA}, s43, v15")
    a(f"v_xor_b32 v{XA+1}, 64, v{XA}")
    a("v_mul_u32_u24 v15, 3584, v13")
    a("v_bfe_u32 v16, v2, 2, 2"); a("v_lshl_add_u32 v15, v16, 6, v15")
    a("v_and_b32 v16, 1, v2"); a("v_lshl_add_u32 v15, v16, 3, v15")
    a("v_bfe_u32 v16, v2, 1, 1"); a("v_lshl_add_u32 v15, v16, 4, v15")
    a("v_and_b32 v16, 1, v13")
    a("v_xor_b32 v16, s41, v16")
    a("v_lshl_add_u32 v17, v16, 5, v15")
    a("v_xor_b32 v18, 32, v17")
    a("s_mul_i32 s43, s41, 768"); a("s_lshl_b32 s44, s41, 10")
    for st in range(NB):
        a(f"s_add_u32 s45, s43, {B_BASE + st*B_ST}"); a(f"v_add_u32 v{WB + st*2}, s45, v17")
        a(f"s_add_u32 s45, s44, {B_BASE + st*B_ST}"); a(f"v_add_u32 v{WB + st*2 + 1}, s45, v18")
    a("s_waitcnt vmcnt(0)")
    for nt in range(7):
        b = XF[1] + nt*2
        t = ACC + nt*16
        a(f"v_lshlrev_b32 v{t}, 16, v{b}"); a(f"v_and_b32 v{t+1}, 0xffff0000, v{b}")
        a(f"v_lshlrev_b32 v{t+2}, 16, v{b+1}"); a(f"v_and_b32 v{t+3}, 0xffff0000, v{b+1}")
        for mt in range(1, 4):
            for r in range(4):
                a(f"v_mov_b32 v{t+mt*4+r}, v{t+r}")
    def reads(t):
        s = t >> 1; ks = t & 1; buf = s % NB; fs = t & 1
        out = []
        for mt in range(4):
            out.append(f"ds_read_b128 {vr(XF[fs] + mt*4, 4)}, v{XA+ks} offset:{buf*A_ST + mt*2048}")
        for nt in range(7):
            for hf in range(2):
                out.append(f"ds_read_b64_tr_b16 {vr(WF[fs] + nt*4 + hf*2, 2)}, v{WB + buf*2 + (nt&1)} offset:{(8*ks+hf)*1792 + (nt>>1)*256}")
        return out
    pf.stamp(2)
    a("s_barrier")
    pf.stamp(3)
    for r in reads(0): a(r)
    T = NST * 2
    for t in range(T):
        fs = t & 1
        a("s_waitcnt lgkmcnt(0)")
        if (t & 1) and t + 1 < T:
            a("s_barrier")
        if t == 8: pf.stamp(4)
        if t == 16: pf.stamp(5)
        rd = reads(t + 1) if t + 1 < T else []
        i = 0
        for nt in range(7):
            for mt in range(4):
                acc = vr(ACC + (nt*4+mt)*4, 4)
                a(f"v_mfma_f32_16x16x32_bf16 {acc}, {vr(WF[fs]+nt*4, 4)}, {vr(XF[fs]+mt*4, 4)}, {acc}")
                if i < len(rd): a(rd[i]); i += 1
    pf.stamp(6)
    c0 = -2.0 * 0.7978845608028654 * 1.4426950408889634
    c1 = c0 * 0.044715
    a(f"s_mov_b32 s46, {f32(c1)}"); a(f"s_mov_b32 s47, {f32(c0)}")
    a("s_mul_i32 s48, s16, 112"); a("s_mul_i32 s49, s17, 7"); a("s_add_u32 s48, s48, s49")
    a("s_lshl_b32 s48, s48, 13")
    a("s_lshl_b32 s49, s40, 12")
    a("s_add_u32 s48, s48, s49")
    a("v_lshlrev_b32 v14, 4, v2")
    a("s_lshl_b32 s49, s41, 3")
    a("v_add_u32 v15, s49, v14")
    a("s_add_u32 s50, s48, %d" % (3*8192))
    a("s_lshl_b32 s49, s41, 15")
    a("s_add_u32 s51, s48, s49")
    a("s_nop 7")
    TMP = 32
    def gelu4(t, dst, tmp):
        for h in range(2):
            x = vr(t + 2*h, 2); u = vr(tmp + 2*h, 2)
            a(f"v_pk_mul_f32 {u}, {x}, {x}")
        for h in range(2):
            u = vr(tmp + 2*h, 2)
            a(f"v_pk_fma_f32 {u}, {u}, s[46:47], s[46:47] op_sel:[0,0,1] op_sel_hi:[1,0,1]")
        for h in range(2):
            x = vr(t + 2*h, 2); u = vr(tmp + 2*h, 2)
            a(f"v_pk_mul_f32 {u}, {u}, {x}")
        for j in range(4): a(f"v_exp_f32 v{tmp+j}, v{tmp+j}")
        for h in range(2):
            u = vr(tmp + 2*h, 2)
            a(f"v_pk_add_f32 {u}, {u}, 1.0 op_sel_hi:[1,0]")
        for j in range(4): a(f"v_rcp_f32 v{tmp+j}, v{tmp+j}")
        for h in range(2):
            x = vr(t + 2*h, 2); u = vr(tmp + 2*h, 2)
            a(f"v_pk_mul_f32 {u}, {u}, {x}")
        for h in range(2):
            a(f"v_cvt_pk_bf16_f32 v{dst+h}, v{tmp+2*h}, v{tmp+2*h+1}")
    a("s_cmp_eq_u32 s41, 1"); a("s_cbranch_scc1 K1_EPI1")
    for wc in range(2):
        if wc == 1: a.label("K1_EPI1")
        single = 6 if wc == 0 else 0
        pairs = [(0,1),(2,3),(4,5)] if wc == 0 else [(1,2),(3,4),(5,6)]
        k = 0
        for pi, (n0, n1) in enumerate(pairs):
            for mt in range(4):
                dst = 64 + (k % 8) * 4; k += 1
                gelu4(ACC + (n0*4+mt)*4, dst, TMP)
                gelu4(ACC + (n1*4+mt)*4, dst + 2, TMP + 4)
                if pi > 0 or True:
                    a(f"s_add_u32 s52, s51, {pi*8192 + mt*1024}")
                a(f"buffer_store_dwordx4 {vr(dst,4)}, v14, s[32:35], s52 offen{P.hst}")
        for mt in range(4):
            dst = 64 + (k % 8) * 4; k += 1
            gelu4(ACC + (single*4+mt)*4, dst, TMP)
            a(f"buffer_store_dwordx2 {vr(dst,2)}, v15, s[32:35], s50 offen offset:{mt*1024}{P.hst}")
        pf.dump()
        a("s_endpgm")
    a.label("K1_LOADA")
    a("v_lshrrev_b32 v3, 3, v2")
    a("v_and_b32 v4, 7, v2"); a("v_xor_b32 v4, v4, v3"); a("v_lshlrev_b32 v4, 4, v4")
    a("v_lshl_add_u32 v4, v3, 11, v4")
    a("s_lshl_b32 s40, s16, 18")
    a("v_add_u32 v8, s40, v4")
    for j in range(1, 16): a(f"v_add_u32 v{8+j}, {j*16384}, v8")
    def loader(n, regs, srdn, kstep, ldsbase):
        q = VmQ(a)
        def issue(s):
            a(f"s_mov_b32 s41, {s*kstep}")
            for j in range(n):
                a(f"s_add_u32 m0, s42, {ldsbase(s % NB) + j*1024}")
                a("s_nop 0")
                a(f"buffer_load_dwordx4 v{regs+j}, s[{srdn}:{srdn+3}], s41 offen lds")
                q.issue(("st", s) if j == n-1 else None)
        pf.stamp(2)
        for s in range(NB): issue(s)
        pf.stamp(3)
        q.wait(("st", 0)); pf.stamp(4); a("s_barrier")
        for s in range(NST - 1):
            q.wait(("st", s+1))
            if s == 0: pf.stamp(5)
            if s == 1: pf.stamp(6)
            a("s_barrier")
            if s + NB < NST: issue(s + NB)
        pf.dump()
        a("s_endpgm")
    a("s_mov_b32 s42, 0")
    loader(16, 8, 20, 128, lambda b: b * A_ST)
    a.label("K1_LOADB")
    a("s_sub_u32 s40, s3, 5")
    a("s_mul_i32 s43, s40, 56")
    a("v_lshrrev_b32 v3, 4, v2")
    a("v_add_u32 v3, s43, v3")
    a("v_bfe_u32 v4, v2, 2, 2")
    a("v_and_b32 v5, 3, v2")
    a("s_mul_i32 s44, s17, 448")
    a("s_movk_i32 s45, 7168")
    for j in range(14):
        a(f"v_add_u32 v6, {4*j}, v3")
        a("v_mul_u32_u24 v7, 147, v6"); a("v_lshrrev_b32 v7, 10, v7")
        a("v_mul_u32_u24 v30, 7, v7"); a("v_sub_u32 v30, v6, v30")
        a("v_and_b32 v31, 2, v7")
        a("v_xor_b32 v31, v31, v5")
        a("v_lshl_add_u32 v31, v30, 2, v31")
        a("v_lshl_add_u32 v7, v7, 2, v4")
        a("v_mul_lo_u32 v7, v7, s45")
        a("v_lshl_add_u32 v7, v31, 4, v7")
        a(f"v_add_u32 v{8+j}, s44, v7")
    a("s_mul_i32 s42, s40, 14336")
    loader(14, 8, 24, 64 * 7168, lambda b: B_BASE + b * B_ST)
    a.label("K1_TOUCH")
    if P.touch1:
        if P.k1map == "8x4":
            xrows, wlines = 1024, 14
            a("s_and_b32 s40, s14, 1"); a("s_lshl_b32 s40, s40, 21")
            a("s_lshr_b32 s41, s14, 1"); a("s_mul_i32 s41, s41, 1792")
        else:
            xrows, wlines = 512, 28
            a("s_lshr_b32 s40, s14, 1"); a("s_lshl_b32 s40, s40, 20")
            a("s_and_b32 s41, s14, 1"); a("s_mul_i32 s41, s41, 3584")
        lpr = 64 * 32 // xrows
        sh = lpr.bit_length() - 1
        a(f"v_lshrrev_b32 v3, {sh}, v2"); a(f"v_and_b32 v4, {lpr-1}, v2")
        a(f"s_mul_i32 s42, s15, {xrows//32}")
        a("v_add_u32 v3, s42, v3"); a("v_lshlrev_b32 v3, 11, v3"); a("v_lshl_add_u32 v3, v4, 7, v3")
        a("v_add_u32 v3, s40, v3")
        nxr = 16 // lpr
        rpw = 64 // wlines
        a(f"s_movk_i32 s43, {65536//wlines + 1}")
        a("v_mul_u32_u24 v5, s43, v2"); a("v_lshrrev_b32 v5, 16, v5")
        a(f"v_mul_u32_u24 v6, {wlines}, v5"); a("v_sub_u32 v6, v2, v6")
        a(f"v_min_u32 v5, {rpw-1}, v5")
        a(f"s_mul_i32 s42, s15, {rpw}")
        a("v_add_u32 v5, s42, v5"); a("s_movk_i32 s45, 7168"); a("v_mul_lo_u32 v5, v5, s45")
        a("v_lshl_add_u32 v5, v6, 7, v5"); a("v_add_u32 v5, s41, v5")
        nwr = 1024 // (32 * rpw)
        ev = []
        for r in range(nxr): ev.append(((r + 0.5) / nxr, "x", r))
        for r in range(nwr): ev.append(((r + 0.5) / nwr, "w", r))
        ev.sort()
        k = 0
        for _, kind, r in ev:
            if kind == "x":
                if (r + 1) * lpr * 64 <= P.touch_skip: continue
                a(f"s_movk_i32 s44, {r * lpr * 128}")
                a(f"buffer_load_dword v{8+k}, v3, s[20:23], s44 offen")
            else:
                if (r + 1) * 32 * rpw <= P.touch_skip: continue
                a(f"s_mov_b32 s44, {r * 32 * rpw * 7168}")
                a(f"buffer_load_dword v{8+k}, v5, s[24:27], s44 offen")
            k += 1
        if P.touchw2:
            a("s_waitcnt vmcnt(0)")
            a("v_lshlrev_b32 v3, 7, v2")
            a("s_mul_i32 s44, s2, 8192")
            for r in range(4):
                a(f"buffer_load_dword v{8+r}, v3, s[36:39], s44 offen")
                a(f"s_add_u32 s44, s44, {256*8192}")
        a("s_waitcnt vmcnt(0)")
        pf.dump()
    a.label("K1_END")
    a("s_endpgm")
    return dict(name="k1_kernel", vgpr=240, lds=NB * (A_ST + B_ST), block=512)

def gen_k2(a, P):
    NST = 28
    NB = P.k2nb
    ST = 16384
    RED = NB * ST
    PD = P.k2pd
    a.raw(".p2align 8")
    a.raw(".type k2_kernel,@function")
    a.label("k2_kernel")
    a("s_cmp_ge_u32 s2, 256")
    a("s_cbranch_scc1 K2_END")
    pf = Prof(a, P.prof, 1, 12)
    pf.rt(0); pf.stamp(1)
    a("s_load_dwordx4 s[4:7], s[0:1], 24")
    a("s_load_dwordx2 s[8:9], s[0:1], 40")
    a("s_load_dwordx2 s[12:13], s[0:1], 56")
    a("v_lshrrev_b32 v1, 6, v0")
    a("v_and_b32 v2, 63, v0")
    a("v_readfirstlane_b32 s3, v1")
    a("s_and_b32 s14, s2, 7"); a("s_lshr_b32 s15, s2, 3")
    if P.k1map == "8x4":
        a("s_and_b32 s16, s14, 1"); a("s_lshl_b32 s16, s16, 1"); a("s_bfe_u32 s17, s14, 0x10001"); a("s_add_u32 s16, s16, s17")
        a("s_lshr_b32 s18, s14, 2")
    else:
        a("s_lshr_b32 s16, s14, 1"); a("s_and_b32 s18, s14, 1")
    a("s_mov_b32 s60, s16"); a("s_mov_b32 s61, s18")
    a("s_lshl_b32 s16, s16, 2"); a("s_and_b32 s17, s15, 3"); a("s_add_u32 s16, s16, s17")
    a("s_lshl_b32 s18, s18, 3"); a("s_lshr_b32 s17, s15, 2"); a("s_add_u32 s17, s17, s18")
    a("s_waitcnt lgkmcnt(0)")
    srd(a, 20, 4, W2_BYTES)
    srd(a, 24, 12, H_BYTES)
    srd(a, 28, 6, D * 2)
    srd(a, 32, 8, OUT_BYTES)
    if P.touch2:
        a("s_cmp_eq_u32 s3, 8"); a("s_cbranch_scc1 K2_TOUCH")
    ACC = 32
    WF = [64, 80]
    HF = 96
    a("s_and_b32 s40, s3, 3")
    a("s_lshr_b32 s41, s3, 2")
    a("v_and_b32 v12, 15, v2"); a("v_lshrrev_b32 v13, 4, v2")
    a("v_lshlrev_b32 v3, 4, v2")
    a("s_mul_i32 s42, s16, %d" % (112*8192)); a("s_lshl_b32 s43, s40, 11"); a("s_add_u32 s42, s42, s43")
    a("s_lshl_b32 s43, s41, 13"); a("s_add_u32 s42, s42, s43")
    a("v_add_u32 v3, s42, v3")
    a("v_lshrrev_b32 v4, 3, v2")
    a("v_bfe_u32 v5, v2, 1, 2"); a("v_bfe_u32 v6, v2, 4, 2"); a("v_xor_b32 v5, v5, v6"); a("v_lshlrev_b32 v5, 5, v5")
    a("v_and_b32 v6, 1, v2"); a("v_lshl_add_u32 v5, v6, 4, v5")
    a("v_lshl_add_u32 v4, v4, 11, v5")
    a("s_lshl_b32 s42, s3, 15")
    a("s_lshl_b32 s43, s17, 7"); a("s_add_u32 s42, s42, s43")
    a("v_add_u32 v4, s42, v4")
    a("v_add_u32 v5, 16384, v4")
    a("s_lshl_b32 s44, s3, 11")
    a("v_bfe_u32 v6, v2, 2, 2")
    a("v_lshl_add_u32 v7, v13, 2, v6")
    a("v_lshlrev_b32 v7, 7, v7")
    a("v_and_b32 v8, 3, v2"); a("v_lshl_add_u32 v7, v8, 3, v7")
    a("v_bfe_u32 v8, v2, 3, 2")
    a("s_lshl_b32 s45, s41, 12")
    a("v_add_u32 v7, s45, v7")
    NBASE = (NB * ST + 65535) // 65536
    WB = 16
    for nt in range(4):
        a(f"v_xor_b32 v9, {nt}, v8"); a(f"v_lshl_add_u32 v{WB+nt}, v9, 5, v7")
        for w in range(1, NBASE):
            a(f"v_add_u32 v{WB+w*4+nt}, {w*65536}, v{WB+nt}")
    assert WB + NBASE*4 <= ACC
    q = VmQ(a)
    def dma(s):
        a(f"s_mov_b32 s46, {s*128*2048}")
        for j in range(2):
            a(f"s_add_u32 m0, s44, {(s % NB)*ST + j*1024}")
            a("s_nop 0")
            return_ = f"buffer_load_dwordx4 v{4+j}, s[20:23], s46 offen lds"
            a(return_)
            q.issue(("w", s) if j == 1 else None)
    def hload(u):
        a(f"s_mov_b32 s47, {u*16384}")
        for mt in range(2):
            a(f"buffer_load_dwordx4 {vr(HF + (u % PD)*8 + mt*4, 4)}, v3, s[24:27], s47 offen offset:{mt*1024}")
            q.issue(("h", u) if mt == 1 else None)
    def reads(u):
        s = u >> 1; j = u & 1; fs = u & 1
        base = (s % NB) * ST + j * 64 * 128
        out = []
        for nt in range(4):
            for hf in range(2):
                off = base + hf * 2048
                out.append(f"ds_read_b64_tr_b16 {vr(WF[fs] + nt*4 + hf*2, 2)}, v{WB + (off >> 16)*4 + nt} offset:{off & 65535}")
        return out
    U = NST * 2
    dma(0); hload(0); hload(1)
    nd = 1; nh = 2
    while nd < NB or nh < PD:
        if nd < NB: dma(nd); nd += 1
        for _ in range(2):
            if nh < PD: hload(nh); nh += 1
    for i in range(32): a(f"v_mov_b32 v{ACC+i}, 0")
    pf.stamp(2)
    q.wait(("w", 0)); a("s_barrier")
    pf.stamp(3)
    for r in reads(0): a(r)
    for u in range(U):
        fs = u & 1; s = u >> 1
        a("s_waitcnt lgkmcnt(0)")
        if (u & 1) and u + 1 < U:
            q.wait(("w", s + 1)); a("s_barrier")
        q.wait(("h", u))
        if u == 8: pf.stamp(4)
        if u == 28: pf.stamp(5)
        rd = reads(u + 1) if u + 1 < U else []
        i = 0
        for nt in range(4):
            for mt in range(2):
                acc = vr(ACC + (nt*2+mt)*4, 4)
                a(f"v_mfma_f32_16x16x32_bf16 {acc}, {vr(WF[fs]+nt*4, 4)}, {vr(HF + (u % PD)*8 + mt*4, 4)}, {acc}")
                if i < len(rd): a(rd[i]); i += 1
        if (u & 1) and s + NB < NST: dma(s + NB)
        if u + PD < U: hload(u + PD)
    pf.stamp(6)
    a("s_lshl_b32 s42, s17, 7")
    a("v_lshlrev_b32 v14, 3, v13")
    for nt in range(4):
        a(f"buffer_load_dwordx2 {vr(WF[0] + nt*2, 2)}, v14, s[28:31], s42 offen offset:{nt*32}")
    a("v_lshlrev_b32 v15, 4, v2")
    a("s_lshl_b32 s43, s3, 12"); a(f"s_add_u32 s43, s43, {RED}")
    a("v_add_u32 v10, s43, v15")
    a("v_xor_b32 v11, 16384, v10")
    a("s_nop 4")
    a("s_cmp_eq_u32 s41, 1"); a("s_cbranch_scc1 K2_RED1")
    for kp in range(2):
        if kp == 1: a.label("K2_RED1")
        for nt in range(4):
            a(f"ds_write_b128 v10, {vr(ACC + (nt*2 + (1-kp))*4, 4)} offset:{nt*1024}")
        a("s_waitcnt lgkmcnt(0)")
        a("s_barrier")
        for nt in range(4):
            a(f"ds_read_b128 {vr(HF + nt*4, 4)}, v11 offset:{nt*1024}")
        a("s_lshl_b32 s42, s16, 7"); a("s_lshl_b32 s43, s40, 5"); a("s_add_u32 s42, s42, s43"); a(f"s_add_u32 s42, s42, {kp*16}")
        a("s_lshl_b32 s42, s42, 11"); a("s_lshl_b32 s43, s17, 7"); a("s_add_u32 s42, s42, s43")
        a("v_lshl_add_u32 v15, v12, 11, v14")
        a("s_waitcnt vmcnt(0) lgkmcnt(0)")
        for nt in range(4):
            t = ACC + (nt*2 + kp)*4; p = HF + nt*4; b = WF[0] + nt*2; tb = WF[1]
            a(f"v_lshlrev_b32 v{tb}, 16, v{b}"); a(f"v_and_b32 v{tb+1}, 0xffff0000, v{b}")
            a(f"v_lshlrev_b32 v{tb+2}, 16, v{b+1}"); a(f"v_and_b32 v{tb+3}, 0xffff0000, v{b+1}")
            for r in range(4):
                a(f"v_add_f32 v{t+r}, v{t+r}, v{p+r}")
            for r in range(4):
                a(f"v_add_f32 v{t+r}, v{t+r}, v{tb+r}")
            a(f"v_cvt_pk_bf16_f32 v{p}, v{t}, v{t+1}"); a(f"v_cvt_pk_bf16_f32 v{p+1}, v{t+2}, v{t+3}")
            a(f"buffer_store_dwordx2 {vr(p,2)}, v15, s[32:35], s42 offen offset:{nt*32}")
        pf.dump()
        a("s_endpgm")
    nwaves = 8
    if P.touch2:
        nwaves = 9
        a.label("K2_TOUCH")
        a("v_lshlrev_b32 v3, 7, v2")
        a("s_mul_i32 s42, s16, %d" % (112*8192)); a("s_lshr_b32 s43, s15, 2"); a("s_lshl_b32 s43, s43, 13"); a("s_add_u32 s42, s42, s43")
        a("v_add_u32 v3, s42, v3")
        a("v_lshrrev_b32 v4, 3, v2"); a("v_and_b32 v5, 7, v2"); a("v_lshlrev_b32 v5, 7, v5"); a("v_lshl_add_u32 v4, v4, 11, v5")
        a("s_lshl_b32 s42, s15, 14"); a("s_lshl_b32 s43, s61, 10"); a("s_add_u32 s42, s42, s43")
        a("v_add_u32 v4, s42, v4")
        LEAD = P.k2lead
        def touch(sp):
            a(f"s_mov_b32 s46, {sp*65536}"); a(f"buffer_load_dword v{8 + (sp%8)*2}, v3, s[24:27], s46 offen")
            a(f"s_mov_b32 s47, {sp*256*2048}"); a(f"buffer_load_dword v{9 + (sp%8)*2}, v4, s[20:23], s47 offen")
        for sp in range(P.k2skip, LEAD): touch(sp)
        a("s_barrier")
        sp = LEAD
        for s in range(NST - 1):
            if sp >= 14: break
            a("s_barrier")
            if s & 1: touch(sp); sp += 1
        a("s_waitcnt vmcnt(0)")
        pf.dump()
    a.label("K2_END")
    a("s_endpgm")
    return dict(name="k2_kernel", vgpr=(HF + PD*8 + 7)//8*8, lds=RED + 32768, block=nwaves*64)

def main():
    ap = argparse.ArgumentParser()
    ap.add_argument("-o", default="mlp.s")
    ap.add_argument("--k1map", default="8x4")
    ap.add_argument("--hst", default="")
    ap.add_argument("--touch1", type=int, default=1)
    ap.add_argument("--touch_skip", type=int, default=128)
    ap.add_argument("--touchw2", type=int, default=1)
    ap.add_argument("--touch2", type=int, default=1)
    ap.add_argument("--k2nb", type=int, default=6)
    ap.add_argument("--k2pd", type=int, default=8)
    ap.add_argument("--k2lead", type=int, default=5)
    ap.add_argument("--k2skip", type=int, default=2)
    ap.add_argument("--only", default="")
    ap.add_argument("--prof", type=int, default=0)
    P = ap.parse_args()
    if P.hst: P.hst = " " + P.hst.replace("+", " ")
    a = Asm()
    ks = [gen_k1(a, P), gen_k2(a, P)]
    hdr = []
    for k in ks:
        if P.only and k["name"] != P.only: continue
        hdr.append(f"; @launch kernel={k['name']} grid=(256,1,1) block=({k['block']},1,1) lds={k['lds']}")
    hdr.append('.amdgcn_target "amdgcn-amd-amdhsa--gfx950"')
    hdr.append(".text")
    for k in ks: hdr.append(f".globl {k['name']}")
    tail = ['.section .rodata,"a"']
    for k in ks:
        tail += [".p2align 6", f".amdhsa_kernel {k['name']}",
                 f"  .amdhsa_next_free_vgpr {k['vgpr']}", "  .amdhsa_next_free_sgpr 102",
                 f"  .amdhsa_accum_offset {k['vgpr']}", "  .amdhsa_group_segment_fixed_size 0",
                 "  .amdhsa_kernarg_size 64", "  .amdhsa_user_sgpr_count 2",
                 "  .amdhsa_user_sgpr_kernarg_segment_ptr 1", "  .amdhsa_system_sgpr_workgroup_id_x 1",
                 ".end_amdhsa_kernel"]
    open(P.o, "w").write("\n".join(hdr) + "\n" + a.text() + "\n".join(tail) + "\n")

if __name__ == "__main__":
    main()
```

```python
import sys, argparse

S, D, F = 2048, 1024, 3584
X_BYTES = S * D * 2
W1_BYTES = D * F * 2
W2_BYTES = F * D * 2
H_BYTES = S * F * 2
OUT_BYTES = S * D * 2

class Asm:
    def __init__(self):
        self.L = []
    def __call__(self, s):
        self.L.append("    " + s)
    def label(self, s):
        self.L.append(s + ":")
    def raw(self, s):
        self.L.append(s)
    def text(self):
        return "\n".join(self.L) + "\n"

def vr(b, n):
    return f"v[{b}:{b+n-1}]" if n > 1 else f"v{b}"
def sr(b, n):
    return f"s[{b}:{b+n-1}]" if n > 1 else f"s{b}"

def srd(a, dst, ptr, nbytes):
    a(f"s_mov_b32 s{dst}, s{ptr}")
    a(f"s_and_b32 s{dst+1}, s{ptr+1}, 0xffff")
    a(f"s_mov_b32 s{dst+2}, {nbytes}")
    a(f"s_mov_b32 s{dst+3}, 0x20000")

class VmQ:
    def __init__(self, a):
        self.a = a; self.n = 0; self.tags = {}; self.done = 0
    def issue(self, tag=None):
        self.n += 1
        if tag is not None: self.tags[tag] = self.n
        assert self.n - self.done <= 63, "too many outstanding"
    def wait(self, tag):
        idx = self.tags[tag]
        if idx <= self.done: return
        cnt = self.n - idx
        self.a(f"s_waitcnt vmcnt({cnt})")
        self.done = idx

PROF_BASE = 64 << 20
class Prof:
    def __init__(self, a, on, kidx, wsreg):
        self.a = a; self.on = on; self.kidx = kidx; self.ws = wsreg
    def stamp(self, i):
        if self.on:
            self.a(f"s_memtime s[{70+2*i}:{71+2*i}]")
    def rt(self, i):
        if self.on:
            self.a(f"s_memrealtime s[{70+2*i}:{71+2*i}]")
    def dump(self):
        if not self.on: return
        a = self.a
        a("s_waitcnt vmcnt(0)")
        a("s_memtime s[84:85]"); a("s_memrealtime s[86:87]")
        a("s_waitcnt lgkmcnt(0)")
        a(f"s_mov_b32 s92, s{self.ws}"); a(f"s_and_b32 s93, s{self.ws+1}, 0xffff"); a("s_mov_b32 s94, 0x10000000"); a("s_mov_b32 s95, 0x20000")
        a("s_lshl_b32 s90, s2, 4"); a("s_add_u32 s90, s90, s3"); a("s_lshl_b32 s90, s90, 6")
        a(f"s_add_u32 s90, s90, {PROF_BASE + self.kidx * (1 << 20)}")
        a("v_mov_b32 v1, 0")
        for i in range(9):
            a(f"v_mov_b32 v0, s{70+2*i}")
            a(f"buffer_store_dword v0, v1, s[92:95], s90 offen offset:{4*i}")
        a("s_waitcnt vmcnt(0)")

import struct
def f32(x): return "0x%08x" % struct.unpack("<I", struct.pack("<f", x))[0]

def gen_k1(a, P):
    NST = 16
    NB = 3
    A_ST = 16384; B_ST = 32768
    B_BASE = NB * A_ST
    a.raw(".p2align 8")
    a.raw(".type k1_kernel,@function")
    a.label("k1_kernel")
    a("s_cmp_ge_u32 s2, 256")
    a("s_cbranch_scc1 K1_END")
    pf = Prof(a, P.prof, 0, 12)
    pf.rt(0); pf.stamp(1)
    a("s_load_dwordx4 s[4:7], s[0:1], 0")
    a("s_load_dwordx4 s[8:11], s[0:1], 16")
    a("s_load_dwordx2 s[12:13], s[0:1], 56")
    a("v_lshrrev_b32 v1, 6, v0")
    a("v_and_b32 v2, 63, v0")
    a("v_readfirstlane_b32 s3, v1")
    a("s_and_b32 s14, s2, 7")
    a("s_lshr_b32 s15, s2, 3")
    a("s_and_b32 s16, s14, 1"); a("s_lshl_b32 s16, s16, 3"); a("s_and_b32 s17, s15, 7"); a("s_add_u32 s16, s16, s17")
    a("s_lshr_b32 s17, s14, 1"); a("s_lshl_b32 s17, s17, 2"); a("s_lshr_b32 s18, s15, 3"); a("s_add_u32 s17, s17, s18")
    a("s_cmp_lt_u32 s3, 4"); a("s_cbranch_scc1 K1_COMP")
    a("s_add_u32 s41, s16, s17"); a("s_and_b32 s41, s41, 15")
    if not P.rot1: a("s_mov_b32 s41, 0")
    if P.rot1 in (2, 3, 6):
        a("s_lshr_b32 s41, s14, 1"); a("s_lshl_b32 s41, s41, 2"); a("s_lshl_b32 s42, s14, 3"); a("s_add_u32 s41, s41, s42")
        if P.rot1 == 3: a("s_add_u32 s42, s16, s17"); a("s_and_b32 s42, s42, 1"); a("s_lshl_b32 s42, s42, 1"); a("s_add_u32 s41, s41, s42")
        if P.rot1 == 6: a("s_add_u32 s42, s16, s17"); a("s_and_b32 s42, s42, 3"); a("s_add_u32 s41, s41, s42")
        a("s_and_b32 s41, s41, 15")
    if P.rot1 == 4: a("s_and_b32 s41, s41, 3"); a("s_lshl_b32 s41, s41, 2")
    if P.rot1 == 5: a("s_and_b32 s41, s41, 1"); a("s_lshl_b32 s41, s41, 3")
    a("s_and_b32 s40, s3, 1")
    a("s_cmp_gt_u32 s3, 5"); a("s_cbranch_scc1 K1_LOADA")
    def loader(n, srdn, kstep, ldsbase, mstep, tw2=False):
        q = VmQ(a)
        def issue(s):
            if s > 0:
                a(f"s_add_u32 s41, s41, {kstep}"); a(f"s_cmp_eq_u32 s41, {16*kstep}"); a("s_cselect_b32 s41, 0, s41")
            for j in range(n):
                a(f"s_add_u32 m0, s42, {ldsbase(s % NB) + j*mstep}")
                a("s_nop 0")
                a(f"buffer_load_dwordx4 v{8+j}, s[{srdn}:{srdn+3}], s41 offen lds")
                q.issue(("st", s) if j == n-1 else None)
        pf.stamp(2)
        issue(0); issue(1)
        pf.stamp(3)
        q.wait(("st", 0)); pf.stamp(4); a("s_barrier")
        issue(2)
        for s in range(NST - 1):
            q.wait(("st", s+1))
            if s == 0: pf.stamp(5)
            if s == 1: pf.stamp(6)
            a("s_barrier")
            if s + NB < NST: issue(s + NB)
            if tw2 and s + NB == NST - 1 + P.tw2d:
                srd(a, 36, 10, W2_BYTES)
                a("v_lshrrev_b32 v40, 3, v2"); a("v_and_b32 v41, 7, v2"); a("v_lshlrev_b32 v41, 7, v41"); a("v_lshl_add_u32 v40, v40, 11, v41")
                a("s_lshr_b32 s50, s14, 1"); a("s_mul_i32 s51, s50, 896"); a("s_mul_i32 s52, s15, 28"); a("s_add_u32 s51, s51, s52")
                a("s_lshl_b32 s52, s40, 4"); a("s_add_u32 s51, s51, s52"); a("s_lshl_b32 s51, s51, 11")
                a("s_xor_b32 s50, s50, s14"); a("s_and_b32 s50, s50, 1"); a("s_lshl_b32 s50, s50, 10"); a("s_add_u32 s51, s51, s50")
                for r in range(2):
                    a(f"buffer_load_dword v{44+r}, v40, s[36:39], s51 offen")
                    a("s_add_u32 s51, s51, 16384")
                    q.issue()
        if tw2: a("s_waitcnt vmcnt(0)")
        pf.dump()
        a("s_endpgm")
    a("v_bfe_u32 v4, v2, 2, 2")
    a("v_mul_u32_u24 v4, 7168, v4")
    a("v_lshrrev_b32 v3, 4, v2"); a("v_lshl_add_u32 v4, v3, 6, v4")
    a("v_and_b32 v5, 3, v2"); a("v_lshl_add_u32 v4, v5, 4, v4")
    a("s_mul_i32 s44, s17, 448"); a("s_lshl_b32 s45, s40, 8"); a("s_add_u32 s44, s44, s45")
    a("v_add_u32 v8, s44, v4")
    a("v_xor_b32 v4, 32, v8")
    for j in range(1, 16): a(f"v_add_u32 v{8+j}, {j*28672}, " + ("v4" if j & 2 else "v8"))
    a(f"s_mul_i32 s41, s41, {64*7168}")
    a("s_lshl_b32 s42, s40, 10")
    a("s_lshl_b32 s45, s40, 4")
    a("s_lshr_b32 s45, -1, s45")
    a("s_mov_b32 exec_hi, s45")
    a("s_waitcnt lgkmcnt(0)")
    srd(a, 24, 6, W1_BYTES)
    loader(16, 24, 64 * 7168, lambda b: B_BASE + b * B_ST, 2048)
    a.label("K1_LOADA")
    a("v_lshrrev_b32 v3, 3, v2")
    a("v_and_b32 v4, 7, v2"); a("v_xor_b32 v4, v4, v3"); a("v_lshlrev_b32 v4, 4, v4")
    a("v_lshl_add_u32 v4, v3, 11, v4")
    a("s_lshl_b32 s44, s16, 18")
    a("s_lshl_b32 s45, s40, 17"); a("s_add_u32 s44, s44, s45")
    a("v_add_u32 v8, s44, v4")
    for j in range(1, 8): a(f"v_add_u32 v{8+j}, {j*16384}, v8")
    a("s_lshl_b32 s41, s41, 7")
    a("s_lshl_b32 s42, s40, 13")
    a("s_waitcnt lgkmcnt(0)")
    srd(a, 20, 4, X_BYTES)
    loader(8, 20, 128, lambda b: b * A_ST, 1024, P.tw2)
    a.label("K1_COMP")
    ACC = 128
    XF = [32, 76]; WF = [48, 92]
    XA = 4
    WB = 6
    a("s_and_b32 s40, s3, 1")
    a("s_lshr_b32 s41, s3, 1")
    a("v_and_b32 v12, 15, v2")
    a("v_lshrrev_b32 v13, 4, v2")
    a("s_mul_i32 s42, s17, 448"); a("s_mul_i32 s43, s41, 224"); a("s_add_u32 s42, s42, s43")
    a("v_lshlrev_b32 v14, 3, v13")
    a("s_waitcnt lgkmcnt(0)")
    srd(a, 28, 8, F * 2)
    for nt in range(7):
        a(f"buffer_load_dwordx2 {vr(XF[1] + nt*2, 2)}, v14, s[28:31], s42 offen offset:{nt*32}")
    TOUCH0 = len(a.L)
    srd(a, 32, 12, H_BYTES)
    a("v_and_b32 v15, 7, v12")
    a("v_xor_b32 v15, v15, v13")
    a("v_lshlrev_b32 v15, 4, v15")
    a("v_lshl_add_u32 v15, v12, 7, v15")
    a("s_lshl_b32 s43, s40, 13")
    a(f"v_add_u32 v{XA}, s43, v15")
    a(f"v_xor_b32 v{XA+1}, 64, v{XA}")
    a("v_lshlrev_b32 v15, 12, v13")
    a("v_bfe_u32 v16, v2, 2, 2"); a("v_lshl_add_u32 v15, v16, 6, v15")
    a("v_and_b32 v16, 3, v2"); a("v_lshl_add_u32 v15, v16, 3, v15")
    a("v_and_b32 v16, 1, v13")
    a("v_xor_b32 v16, s41, v16")
    a("v_lshl_add_u32 v17, v16, 5, v15")
    a("v_xor_b32 v18, 32, v17")
    a("s_mul_i32 s43, s41, 768"); a("s_lshl_b32 s44, s41, 10")
    for st in range(NB):
        a(f"s_add_u32 s45, s43, {B_BASE + st*B_ST}"); a(f"v_add_u32 v{WB + st*2}, s45, v17")
        a(f"s_add_u32 s45, s44, {B_BASE + st*B_ST}"); a(f"v_add_u32 v{WB + st*2 + 1}, s45, v18")
    a("s_waitcnt vmcnt(BIASW)")
    for nt in range(7):
        b = XF[1] + nt*2
        t = ACC + nt*16
        a(f"v_lshlrev_b32 v{t}, 16, v{b}"); a(f"v_and_b32 v{t+1}, 0xffff0000, v{b}")
        a(f"v_lshlrev_b32 v{t+2}, 16, v{b+1}"); a(f"v_and_b32 v{t+3}, 0xffff0000, v{b+1}")
    def reads(t):
        s = t >> 1; ks = t & 1; buf = s % NB; fs = t & 1
        out = []
        for mt in range(4):
            out.append(f"ds_read_b128 {vr(XF[fs] + mt*4, 4)}, v{XA+ks} offset:{buf*A_ST + mt*2048}")
        for nt in range(7):
            for hf in range(2):
                out.append(f"ds_read_b64_tr_b16 {vr(WF[fs] + nt*4 + hf*2, 2)}, v{WB + buf*2 + (nt&1)} offset:{(8*ks+hf)*2048 + (nt>>1)*256}")
        return out
    def touches():
        srd(a, 20, 4, X_BYTES); srd(a, 24, 6, W1_BYTES)
        a("v_min_u32 v20, 55, v2"); a("v_lshlrev_b32 v20, 7, v20")
        a("s_lshl_b32 s50, s3, 8"); a("s_add_u32 s50, s50, s2"); a("s_mul_i32 s50, s50, 7168")
        a("v_and_b32 v21, 7, v2"); a("v_lshlrev_b32 v21, 11, v21"); a("v_lshrrev_b32 v22, 3, v2"); a("v_lshl_add_u32 v21, v22, 7, v21")
        a("s_lshl_b32 s51, s2, 14"); a("s_lshl_b32 s52, s41, 10"); a("s_add_u32 s51, s51, s52")
        a("s_cmp_eq_u32 s40, 1"); a("s_cbranch_scc1 K1_NOX")
        a("buffer_load_dword v23, v21, s[20:23], s51 offen")
        a.label("K1_NOX")
        a("buffer_load_dword v24, v20, s[24:27], s50 offen")
    if P.t1 == 1: touches()
    if P.t1 == 3:
        n0 = len(a.L); touches(); blk = a.L[n0:]; del a.L[n0:]; a.L[TOUCH0:TOUCH0] = blk
    a.L[:] = [l.replace("BIASW", "1" if P.t1 == 3 else "0") for l in a.L]
    pf.stamp(2)
    a("s_barrier")
    pf.stamp(3)
    if P.t1 == 2: touches()
    for r in reads(0): a(r)
    T = NST * 2
    for t in range(T):
        fs = t & 1
        a("s_waitcnt lgkmcnt(0)")
        if (t & 1) and t + 1 < T:
            a("s_barrier")
        if t == 8: pf.stamp(4)
        if t == 16: pf.stamp(5)
        rd = reads(t + 1) if t + 1 < T else []
        i = 0
        for nt in range(7):
            for mt in (range(4) if t > 0 else (1, 2, 3, 0)):
                acc = vr(ACC + (nt*4+mt)*4, 4)
                src = acc if t > 0 else vr(ACC + nt*16, 4)
                a(f"v_mfma_f32_16x16x32_bf16 {acc}, {vr(WF[fs]+nt*4, 4)}, {vr(XF[fs]+mt*4, 4)}, {src}")
                if i < len(rd): a(rd[i]); i += 1
    pf.stamp(6)
    c0 = -2.0 * 0.7978845608028654 * 1.4426950408889634
    c1 = c0 * 0.044715
    a(f"s_mov_b32 s46, {f32(c1)}"); a(f"s_mov_b32 s47, {f32(c0)}")
    a("s_mul_i32 s48, s16, 112"); a("s_mul_i32 s49, s17, 7"); a("s_add_u32 s48, s48, s49")
    a("s_lshl_b32 s48, s48, 13")
    a("s_lshl_b32 s49, s40, 12")
    a("s_add_u32 s48, s48, s49")
    a("v_lshlrev_b32 v14, 4, v2")
    a("s_lshl_b32 s49, s41, 3")
    a("v_add_u32 v15, s49, v14")
    a("s_add_u32 s50, s48, %d" % (3*8192))
    a("s_lshl_b32 s49, s41, 15")
    a("s_add_u32 s51, s48, s49")
    a("s_nop 7")
    TMP = 32
    def gelu4(t, dst, tmp):
        for h in range(2):
            x = vr(t + 2*h, 2); u = vr(tmp + 2*h, 2)
            a(f"v_pk_mul_f32 {u}, {x}, {x}")
        for h in range(2):
            u = vr(tmp + 2*h, 2)
            a(f"v_pk_fma_f32 {u}, {u}, s[46:47], s[46:47] op_sel:[0,0,1] op_sel_hi:[1,0,1]")
        for h in range(2):
            x = vr(t + 2*h, 2); u = vr(tmp + 2*h, 2)
            a(f"v_pk_mul_f32 {u}, {u}, {x}")
        for j in range(4): a(f"v_exp_f32 v{tmp+j}, v{tmp+j}")
        for h in range(2):
            u = vr(tmp + 2*h, 2)
            a(f"v_pk_add_f32 {u}, {u}, 1.0 op_sel_hi:[1,0]")
        for j in range(4): a(f"v_rcp_f32 v{tmp+j}, v{tmp+j}")
        for h in range(2):
            x = vr(t + 2*h, 2); u = vr(tmp + 2*h, 2)
            a(f"v_pk_mul_f32 {u}, {u}, {x}")
        for h in range(2):
            a(f"v_cvt_pk_bf16_f32 v{dst+h}, v{tmp+2*h}, v{tmp+2*h+1}")
    a("s_cmp_eq_u32 s41, 1"); a("s_cbranch_scc1 K1_EPI1")
    for wc in range(2):
        if wc == 1: a.label("K1_EPI1")
        single = 6 if wc == 0 else 0
        pairs = [(0,1),(2,3),(4,5)] if wc == 0 else [(1,2),(3,4),(5,6)]
        k = 0
        for pi, (n0, n1) in enumerate(pairs):
            for mt in range(4):
                dst = 64 + (k % 8) * 4; k += 1
                gelu4(ACC + (n0*4+mt)*4, dst, TMP)
                gelu4(ACC + (n1*4+mt)*4, dst + 2, TMP + 4)
                if pi > 0 or True:
                    a(f"s_add_u32 s52, s51, {pi*8192 + mt*1024}")
                a(f"buffer_store_dwordx4 {vr(dst,4)}, v14, s[32:35], s52 offen{P.hst}")
        for mt in range(4):
            dst = 64 + (k % 8) * 4; k += 1
            gelu4(ACC + (single*4+mt)*4, dst, TMP)
            a(f"buffer_store_dwordx2 {vr(dst,2)}, v15, s[32:35], s50 offen offset:{mt*1024}{P.hst}")
        pf.dump()
        a("s_endpgm")
    a.label("K1_END")
    a("s_endpgm")
    return dict(name="k1_kernel", vgpr=240, lds=NB * (A_ST + B_ST), block=512)

def gen_k2(a, P):
    NST = 28
    NB = P.k2nb
    ST = 16384
    RED = NB * ST
    PD = P.k2pd
    a.raw(".p2align 8")
    a.raw(".type k2_kernel,@function")
    a.label("k2_kernel")
    a("s_cmp_ge_u32 s2, 256")
    a("s_cbranch_scc1 K2_END")
    pf = Prof(a, P.prof, 1, 12)
    pf.rt(0); pf.stamp(1)
    a("s_load_dwordx4 s[4:7], s[0:1], 24")
    a("s_load_dwordx2 s[8:9], s[0:1], 40")
    a("s_load_dwordx2 s[12:13], s[0:1], 56")
    a("v_lshrrev_b32 v1, 6, v0")
    a("v_and_b32 v2, 63, v0")
    a("v_readfirstlane_b32 s3, v1")
    a("s_and_b32 s14, s2, 7"); a("s_lshr_b32 s15, s2, 3")
    if P.k1map == "8x4":
        a("s_and_b32 s16, s14, 1"); a("s_lshl_b32 s16, s16, 1"); a("s_lshr_b32 s17, s14, 2"); a("s_add_u32 s16, s16, s17")
        a("s_lshr_b32 s18, s14, 1"); a("s_xor_b32 s18, s18, s14"); a("s_and_b32 s18, s18, 1")
    else:
        a("s_lshr_b32 s16, s14, 1"); a("s_and_b32 s18, s14, 1")
    a("s_mov_b32 s60, s16"); a("s_mov_b32 s61, s18")
    a("s_lshl_b32 s16, s16, 2"); a("s_and_b32 s17, s15, 3"); a("s_add_u32 s16, s16, s17")
    a("s_lshl_b32 s18, s18, 3"); a("s_lshr_b32 s17, s15, 2"); a("s_add_u32 s17, s17, s18")
    a("s_waitcnt lgkmcnt(0)")
    srd(a, 20, 4, W2_BYTES)
    srd(a, 24, 12, H_BYTES)
    srd(a, 28, 6, D * 2)
    srd(a, 32, 8, OUT_BYTES)
    if P.touch2:
        a("s_cmp_eq_u32 s3, 8"); a("s_cbranch_scc1 K2_TOUCH")
    ACC = 32
    WF = [64, 80]
    HF = 96
    a("s_and_b32 s40, s3, 3")
    a("s_lshr_b32 s41, s3, 2")
    a("v_and_b32 v12, 15, v2"); a("v_lshrrev_b32 v13, 4, v2")
    a("v_lshlrev_b32 v3, 4, v2")
    a("s_mul_i32 s42, s16, %d" % (112*8192)); a("s_lshl_b32 s43, s40, 11"); a("s_add_u32 s42, s42, s43")
    a("s_lshl_b32 s43, s41, 13"); a("s_add_u32 s42, s42, s43")
    a("v_add_u32 v3, s42, v3")
    a("v_lshrrev_b32 v4, 3, v2")
    a("v_bfe_u32 v5, v2, 1, 2"); a("v_bfe_u32 v6, v2, 4, 2"); a("v_xor_b32 v5, v5, v6"); a("v_lshlrev_b32 v5, 5, v5")
    a("v_and_b32 v6, 1, v2"); a("v_lshl_add_u32 v5, v6, 4, v5")
    a("v_lshl_add_u32 v4, v4, 11, v5")
    a("s_lshl_b32 s42, s3, 15")
    a("s_lshl_b32 s43, s17, 7"); a("s_add_u32 s42, s42, s43")
    a("v_add_u32 v4, s42, v4")
    a("v_add_u32 v5, 16384, v4")
    a("s_lshl_b32 s44, s3, 11")
    a("v_bfe_u32 v6, v2, 2, 2")
    a("v_lshl_add_u32 v7, v13, 2, v6")
    a("v_lshlrev_b32 v7, 7, v7")
    a("v_and_b32 v8, 3, v2"); a("v_lshl_add_u32 v7, v8, 3, v7")
    a("v_bfe_u32 v8, v2, 3, 2")
    a("s_lshl_b32 s45, s41, 12")
    a("v_add_u32 v7, s45, v7")
    NBASE = (NB * ST + 65535) // 65536
    WB = 16
    for nt in range(4):
        a(f"v_xor_b32 v9, {nt}, v8"); a(f"v_lshl_add_u32 v{WB+nt}, v9, 5, v7")
        for w in range(1, NBASE):
            a(f"v_add_u32 v{WB+w*4+nt}, {w*65536}, v{WB+nt}")
    assert WB + NBASE*4 <= ACC
    q = VmQ(a)
    if P.rot2:
        a("s_lshr_b32 s46, s14, 1"); a("s_mul_i32 s46, s46, 7")
        a("s_and_b32 s47, s15, 3"); a("s_lshr_b32 s48, s15, 2"); a("s_add_u32 s47, s47, s48"); a(f"s_mul_i32 s47, s47, {P.rot2c}")
        a("s_add_u32 s46, s46, s47"); a("s_sub_u32 s47, s46, 28"); a("s_cmp_ge_u32 s46, 28"); a("s_cselect_b32 s46, s47, s46")
        a("s_lshl_b32 s47, s46, 15"); a("s_lshl_b32 s46, s46, 18")
    def dma(s):
        if not P.rot2: a(f"s_mov_b32 s46, {s*128*2048}")
        elif s > 0:
            a(f"s_add_u32 s46, s46, {128*2048}"); a(f"s_cmp_eq_u32 s46, {28*128*2048}"); a("s_cselect_b32 s46, 0, s46")
        for j in range(2):
            a(f"s_add_u32 m0, s44, {(s % NB)*ST + j*1024}")
            a("s_nop 0")
            return_ = f"buffer_load_dwordx4 v{4+j}, s[20:23], s46 offen lds"
            a(return_)
            q.issue(("w", s) if j == 1 else None)
    def hload(u):
        if not P.rot2: a(f"s_mov_b32 s47, {u*16384}")
        elif u > 0:
            a(f"s_add_u32 s47, s47, 16384"); a(f"s_cmp_eq_u32 s47, {56*16384}"); a("s_cselect_b32 s47, 0, s47")
        for mt in range(2):
            a(f"buffer_load_dwordx4 {vr(HF + (u % PD)*8 + mt*4, 4)}, v3, s[24:27], s47 offen offset:{mt*1024}")
            q.issue(("h", u) if mt == 1 else None)
    def reads(u):
        s = u >> 1; j = u & 1; fs = u & 1
        base = (s % NB) * ST + j * 64 * 128
        out = []
        for nt in range(4):
            for hf in range(2):
                off = base + hf * 2048
                out.append(f"ds_read_b64_tr_b16 {vr(WF[fs] + nt*4 + hf*2, 2)}, v{WB + (off >> 16)*4 + nt} offset:{off & 65535}")
        return out
    U = NST * 2
    dma(0); hload(0); hload(1); dma(1)
    nd = 2; nh = 2
    for _ in range(P.k2pre):
        hload(nh); nh += 1
    for i in range(32): a(f"v_mov_b32 v{ACC+i}, 0")
    pf.stamp(2)
    q.wait(("w", 0)); a("s_barrier")
    pf.stamp(3)
    for r in reads(0): a(r)
    for u in range(U):
        fs = u & 1; s = u >> 1
        a("s_waitcnt lgkmcnt(0)")
        if (u & 1) and u + 1 < U:
            q.wait(("w", s + 1)); a("s_barrier")
        q.wait(("h", u))
        if u == 8: pf.stamp(4)
        if u == 28: pf.stamp(5)
        rd = reads(u + 1) if u + 1 < U else []
        i = 0
        for nt in range(4):
            for mt in range(2):
                acc = vr(ACC + (nt*2+mt)*4, 4)
                a(f"v_mfma_f32_16x16x32_bf16 {acc}, {vr(WF[fs]+nt*4, 4)}, {vr(HF + (u % PD)*8 + mt*4, 4)}, {acc}")
                if i < len(rd): a(rd[i]); i += 1
        for _ in range(P.k2ramp):
            if nh < U and nh <= u + PD: hload(nh); nh += 1
            if nh < U and nh <= u + PD and nh <= 2*nd: hload(nh); nh += 1
            if nd < NST and nd <= ((u - 1) >> 1) + NB: dma(nd); nd += 1
    pf.stamp(6)
    a("s_lshl_b32 s42, s17, 7")
    a("v_lshlrev_b32 v14, 3, v13")
    for nt in range(4):
        a(f"buffer_load_dwordx2 {vr(WF[0] + nt*2, 2)}, v14, s[28:31], s42 offen offset:{nt*32}")
    a("v_lshlrev_b32 v15, 4, v2")
    a("s_lshl_b32 s43, s3, 12"); a(f"s_add_u32 s43, s43, {RED}")
    a("v_add_u32 v10, s43, v15")
    a("v_xor_b32 v11, 16384, v10")
    a("s_nop 4")
    a("s_cmp_eq_u32 s41, 1"); a("s_cbranch_scc1 K2_RED1")
    for kp in range(2):
        if kp == 1: a.label("K2_RED1")
        for nt in range(4):
            a(f"ds_write_b128 v10, {vr(ACC + (nt*2 + (1-kp))*4, 4)} offset:{nt*1024}")
        a("s_waitcnt lgkmcnt(0)")
        a("s_barrier")
        for nt in range(4):
            a(f"ds_read_b128 {vr(HF + nt*4, 4)}, v11 offset:{nt*1024}")
        a("s_lshl_b32 s42, s16, 7"); a("s_lshl_b32 s43, s40, 5"); a("s_add_u32 s42, s42, s43"); a(f"s_add_u32 s42, s42, {kp*16}")
        a("s_lshl_b32 s42, s42, 11"); a("s_lshl_b32 s43, s17, 7"); a("s_add_u32 s42, s42, s43")
        a("v_lshl_add_u32 v15, v12, 11, v14")
        a("s_waitcnt vmcnt(0) lgkmcnt(0)")
        for nt in range(4):
            t = ACC + (nt*2 + kp)*4; p = HF + nt*4; b = WF[0] + nt*2; tb = WF[1]
            a(f"v_lshlrev_b32 v{tb}, 16, v{b}"); a(f"v_and_b32 v{tb+1}, 0xffff0000, v{b}")
            a(f"v_lshlrev_b32 v{tb+2}, 16, v{b+1}"); a(f"v_and_b32 v{tb+3}, 0xffff0000, v{b+1}")
            for r in range(4):
                a(f"v_add_f32 v{t+r}, v{t+r}, v{p+r}")
            for r in range(4):
                a(f"v_add_f32 v{t+r}, v{t+r}, v{tb+r}")
            a(f"v_cvt_pk_bf16_f32 v{p}, v{t}, v{t+1}"); a(f"v_cvt_pk_bf16_f32 v{p+1}, v{t+2}, v{t+3}")
            a(f"buffer_store_dwordx2 {vr(p,2)}, v15, s[32:35], s42 offen offset:{nt*32}")
        pf.dump()
        a("s_endpgm")
    nwaves = 8
    if P.touch2:
        nwaves = 9
        a.label("K2_TOUCH")
        a("v_lshlrev_b32 v3, 7, v2")
        a("s_mul_i32 s42, s16, %d" % (112*8192)); a("s_lshr_b32 s43, s15, 2"); a("s_lshl_b32 s43, s43, 13"); a("s_add_u32 s42, s42, s43")
        a("v_add_u32 v3, s42, v3")
        a("v_lshrrev_b32 v4, 3, v2"); a("v_and_b32 v5, 7, v2"); a("v_lshlrev_b32 v5, 7, v5"); a("v_lshl_add_u32 v4, v4, 11, v5")
        a("s_lshl_b32 s42, s15, 14"); a("s_lshl_b32 s43, s61, 10"); a("s_add_u32 s42, s42, s43")
        a("v_add_u32 v4, s42, v4")
        LEAD = P.k2lead
        def touch(sp):
            a(f"s_mov_b32 s46, {sp*65536}"); a(f"buffer_load_dword v{8 + (sp%8)*2}, v3, s[24:27], s46 offen")
            a(f"s_mov_b32 s47, {sp*256*2048}"); a(f"buffer_load_dword v{9 + (sp%8)*2}, v4, s[20:23], s47 offen")
        for sp in range(P.k2skip, LEAD): touch(sp)
        a("s_barrier")
        sp = LEAD
        for s in range(NST - 1):
            if sp >= 14: break
            a("s_barrier")
            if s & 1: touch(sp); sp += 1
        a("s_waitcnt vmcnt(0)")
        pf.dump()
    a.label("K2_END")
    a("s_endpgm")
    return dict(name="k2_kernel", vgpr=(HF + PD*8 + 7)//8*8, lds=RED + 32768, block=nwaves*64)

def main():
    ap = argparse.ArgumentParser()
    ap.add_argument("-o", default="mlp.s")
    ap.add_argument("--k1map", default="8x4")
    ap.add_argument("--hst", default="")
    ap.add_argument("--touch1", type=int, default=1)
    ap.add_argument("--touch_skip", type=int, default=128)
    ap.add_argument("--touchw2", type=int, default=1)
    ap.add_argument("--touch2", type=int, default=0)
    ap.add_argument("--k2nb", type=int, default=6)
    ap.add_argument("--k2pd", type=int, default=8)
    ap.add_argument("--k2lead", type=int, default=5)
    ap.add_argument("--k2skip", type=int, default=2)
    ap.add_argument("--rot1", type=int, default=1)
    ap.add_argument("--rot2", type=int, default=1)
    ap.add_argument("--rot2c", type=int, default=0)
    ap.add_argument("--tw2", type=int, default=1)
    ap.add_argument("--tw2d", type=int, default=1)
    ap.add_argument("--k2pre", type=int, default=2)
    ap.add_argument("--k2ramp", type=int, default=2)
    ap.add_argument("--t1", type=int, default=0)
    ap.add_argument("--only", default="")
    ap.add_argument("--prof", type=int, default=0)
    P = ap.parse_args()
    if P.hst: P.hst = " " + P.hst.replace("+", " ")
    a = Asm()
    ks = [gen_k1(a, P), gen_k2(a, P)]
    hdr = []
    for k in ks:
        if P.only and k["name"] != P.only: continue
        hdr.append(f"; @launch kernel={k['name']} grid=(256,1,1) block=({k['block']},1,1) lds={k['lds']}")
    hdr.append('.amdgcn_target "amdgcn-amd-amdhsa--gfx950"')
    hdr.append(".text")
    for k in ks: hdr.append(f".globl {k['name']}")
    tail = ['.section .rodata,"a"']
    for k in ks:
        tail += [".p2align 6", f".amdhsa_kernel {k['name']}",
                 f"  .amdhsa_next_free_vgpr {k['vgpr']}", "  .amdhsa_next_free_sgpr 102",
                 f"  .amdhsa_accum_offset {k['vgpr']}", "  .amdhsa_group_segment_fixed_size 0",
                 "  .amdhsa_kernarg_size 64", "  .amdhsa_user_sgpr_count 2",
                 "  .amdhsa_user_sgpr_kernarg_segment_ptr 1", "  .amdhsa_system_sgpr_workgroup_id_x 1",
                 ".end_amdhsa_kernel"]
    open(P.o, "w").write("\n".join(hdr) + "\n" + a.text() + "\n".join(tail) + "\n")

if __name__ == "__main__":
    main()
```

```python
import sys, argparse, struct
from gen import Asm, vr, sr, srd, VmQ, f32, S, D, F, X_BYTES, W1_BYTES, W2_BYTES, H_BYTES, OUT_BYTES

KN = "standalone__dense_activation_gelu__prompt_kernel"
WS_SZ = 64 << 20
XCH = 32 << 20
XFL = 48 << 20
PROF_BASE = 64 << 20

class Prof:
    def __init__(self, a, on):
        self.a = a; self.on = on
    def st2(self, i1, i2):
        i = i1 if self.on == 1 else i2
        if self.on and i: self.a(f"s_memtime s[{70+2*i}:{71+2*i}]")
    def stamp(self, i):
        if self.on: self.a(f"s_memtime s[{70+2*i}:{71+2*i}]")
    def rt(self, i):
        if self.on: self.a(f"s_memrealtime s[{70+2*i}:{71+2*i}]")
    def dump(self):
        if not self.on: return
        a = self.a
        a("s_mov_b64 exec, -1")
        a("s_waitcnt vmcnt(0)")
        a("s_memtime s[84:85]"); a("s_memrealtime s[86:87]")
        a("s_waitcnt lgkmcnt(0)")
        a("s_mov_b32 s92, s18"); a("s_and_b32 s93, s19, 0xffff"); a("s_mov_b32 s94, 0x10000000"); a("s_mov_b32 s95, 0x20000")
        a("s_lshl_b32 s90, s2, 4"); a("s_add_u32 s90, s90, s3"); a("s_lshl_b32 s90, s90, 6")
        a(f"s_add_u32 s90, s90, {PROF_BASE}")
        a("v_mov_b32 v1, 0")
        for i in range(9):
            a(f"v_mov_b32 v0, s{70+2*i}")
            a(f"buffer_store_dword v0, v1, s[92:95], s90 offen offset:{4*i}")
        a("s_waitcnt vmcnt(0)")

def gen(a, P):
    REG = 49152
    NST1 = 16
    NST2 = 28; NB2 = 8; PD = 8; U = 56
    SPIN = 40000
    a.raw(".p2align 8"); a.raw(f".type {KN},@function"); a.label(KN)
    a("s_cmp_ge_u32 s2, 256"); a("s_cbranch_scc1 L_END")
    pf = Prof(a, P.prof)
    pf.rt(0); pf.stamp(1)
    a("s_load_dwordx8 s[4:11], s[0:1], 0")
    a("s_load_dwordx8 s[12:19], s[0:1], 32")
    a("v_lshrrev_b32 v1, 6, v0"); a("v_and_b32 v2, 63, v0"); a("v_readfirstlane_b32 s3, v1")
    a("s_and_b32 s22, s2, 7"); a("s_lshr_b32 s23, s2, 3")
    a("s_and_b32 s20, s22, 1"); a("s_lshl_b32 s20, s20, 3"); a("s_and_b32 s21, s23, 7"); a("s_add_u32 s20, s20, s21")
    a("s_lshr_b32 s21, s22, 1"); a("s_lshl_b32 s21, s21, 2"); a("s_lshr_b32 s40, s23, 3"); a("s_add_u32 s21, s21, s40")
    a("s_cmp_lt_u32 s3, 4"); a("s_cbranch_scc1 L_COMP")
    if P.rot1 == 0: a("s_mov_b32 s41, 0")
    elif P.rot1 == 1: a("s_add_u32 s41, s20, s21"); a("s_and_b32 s41, s41, 15")
    else:
        a("s_lshr_b32 s41, s22, 1"); a("s_lshl_b32 s41, s41, 2"); a("s_lshl_b32 s42, s22, 3"); a("s_add_u32 s41, s41, s42")
        if P.rot1 == 3: a("s_add_u32 s42, s20, s21"); a("s_and_b32 s42, s42, 1"); a("s_lshl_b32 s42, s42, 1"); a("s_add_u32 s41, s41, s42")
        a("s_and_b32 s41, s41, 15")
    a("s_and_b32 s40, s3, 1")
    a("s_cmp_gt_u32 s3, 5"); a("s_cbranch_scc1 L_LOADA")
    a("v_bfe_u32 v4, v2, 2, 2"); a("v_mul_u32_u24 v4, 7168, v4")
    a("v_lshrrev_b32 v3, 4, v2"); a("v_lshl_add_u32 v4, v3, 6, v4")
    a("v_and_b32 v5, 3, v2"); a("v_lshl_add_u32 v4, v5, 4, v4")
    a("s_mul_i32 s44, s21, 448"); a("s_lshl_b32 s45, s40, 8"); a("s_add_u32 s44, s44, s45")
    a("v_add_u32 v8, s44, v4"); a("v_xor_b32 v4, 32, v8")
    for j in range(1, 16): a(f"v_add_u32 v{8+j}, {j*28672}, " + ("v4" if j & 2 else "v8"))
    KS = 64 * 7168
    a(f"s_mul_i32 s41, s41, {KS}")
    a("s_lshl_b32 s42, s40, 10"); a(f"s_add_u32 s42, s42, {2*REG + 16384}")
    a(f"s_add_u32 s43, s42, {REG}")
    a("s_lshl_b32 s45, s40, 4"); a("s_lshr_b32 s45, -1, s45"); a("s_mov_b32 exec_hi, s45")
    a("s_waitcnt lgkmcnt(0)")
    srd(a, 24, 6, W1_BYTES)
    def issueB():
        for j in range(16):
            a(f"s_add_u32 m0, s42, {j*2048}")
            if j == 0: a(f"s_add_u32 s46, s41, {KS}")
            elif j == 1: a(f"s_cmp_eq_u32 s46, {16*KS}")
            else: a("s_nop 0")
            a(f"buffer_load_dwordx4 v{8+j}, s[24:27], s41 offen lds")
            if j == 1: a("s_cselect_b32 s46, 0, s46")
        a("s_mov_b32 s41, s46")
        a(f"s_add_u32 s42, s42, {REG}"); a("s_cmp_eq_u32 s42, s43"); a(f"s_cselect_b32 s46, {3*REG}, 0"); a("s_sub_u32 s42, s42, s46")
    pf.stamp(2)
    a("s_mov_b32 s47, 0")
    a.label("L_BLOOP")
    a("s_cmp_lt_u32 s47, 2"); a("s_cbranch_scc1 L_BISS")
    a("s_waitcnt vmcnt(16)"); a("s_barrier")
    a.label("L_BISS")
    issueB()
    a("s_add_u32 s47, s47, 1"); a("s_cmp_lt_u32 s47, 16"); a("s_cbranch_scc1 L_BLOOP")
    pf.stamp(3)
    a("s_mov_b64 exec, -1")
    srd(a, 28, 10, W2_BYTES)
    a("v_lshrrev_b32 v3, 4, v2")
    a("v_bfe_u32 v4, v2, 1, 3"); a("v_xor_b32 v4, v4, v3"); a("v_lshlrev_b32 v4, 5, v4")
    a("v_and_b32 v5, 1, v2"); a("v_lshl_add_u32 v4, v5, 4, v4")
    a("v_lshl_add_u32 v4, v3, 11, v4")
    a("s_lshr_b32 s44, s21, 3"); a(f"s_mul_i32 s44, s44, {1792*2048}")
    a("s_and_b32 s45, s21, 7"); a("s_lshl_b32 s46, s45, 8"); a("s_add_u32 s44, s44, s46")
    a("v_add_u32 v30, s44, v4"); a("v_xor_b32 v4, 128, v30")
    for j in range(1, 8): a(f"v_add_u32 v{30+j}, {j*8192}, " + ("v4" if j & 1 else "v30"))
    a("s_mul_i32 s41, s45, 7"); a("s_add_u32 s41, s41, s40"); a("s_lshl_b32 s41, s41, 16")
    a("s_lshl_b32 s42, s40, 13")
    q = VmQ(a); q.n = 32; q.tags[("a", 14)] = 16; q.tags[("a", 15)] = 32
    def issueW(s, loop=False):
        for j in range(8):
            a(f"s_add_u32 m0, s42, {(0 if loop else (s % NB2) * 16384) + j*1024}")
            if j == 0: a(f"s_add_u32 s46, s41, {2*65536}")
            elif j == 1: a(f"s_sub_u32 s48, s46, {56*65536}")
            elif j == 2: a(f"s_cmp_ge_u32 s46, {56*65536}")
            elif j == 3: a("s_nop 0")
            else: a("s_nop 0")
            if j == 2:
                pass
            a(f"buffer_load_dwordx4 v{30+j}, s[28:31], s41 offen lds")
            if j == 2: a("s_cselect_b32 s46, s48, s46")
            if not loop: q.issue(("w", s) if j == 7 else None)
        a("s_mov_b32 s41, s46")
    q.wait(("a", 14)); a("s_barrier")
    for s in (0, 1, 2): issueW(s)
    q.wait(("a", 15)); a("s_barrier")
    for s in (3, 4, 5): issueW(s)
    a("s_barrier")
    issueW(6)
    q.wait(("w", 0))
    issueW(7)
    pf.stamp(4)
    a("s_barrier")
    pf.stamp(5)
    a("s_mov_b32 s47, 0")
    a.label("L_WLOOP")
    a("s_waitcnt vmcnt(48)"); a("s_barrier")
    issueW(0, True)
    a("s_add_u32 s42, s42, 16384"); a("s_and_b32 s42, s42, 0x1ffff")
    a("s_add_u32 s47, s47, 1"); a("s_cmp_lt_u32 s47, 20"); a("s_cbranch_scc1 L_WLOOP")
    for s in range(20, 27):
        a(f"s_waitcnt vmcnt({(26 - s) * 8})"); a("s_barrier")
    pf.dump(); a("s_endpgm")
    a.label("L_LOADA")
    a("v_lshrrev_b32 v3, 3, v2")
    a("v_and_b32 v4, 7, v2"); a("v_xor_b32 v4, v4, v3"); a("v_lshlrev_b32 v4, 4, v4")
    a("v_lshl_add_u32 v4, v3, 11, v4")
    a("s_lshl_b32 s44, s20, 18"); a("s_lshl_b32 s45, s40, 17"); a("s_add_u32 s44, s44, s45")
    a("v_add_u32 v8, s44, v4")
    for j in range(1, 8): a(f"v_add_u32 v{8+j}, {j*16384}, v8")
    a("s_lshl_b32 s41, s41, 7")
    a("s_lshl_b32 s42, s40, 13")
    a("s_waitcnt lgkmcnt(0)")
    srd(a, 24, 4, X_BYTES)
    q = VmQ(a)
    srd(a, 36, 16, 256)
    srd(a, 56, 18, WS_SZ)
    a("s_lshl_b32 s60, s20, 4"); a("s_add_u32 s61, s60, s21")
    a("s_lshl_b32 s62, s61, 10"); a(f"s_add_u32 s62, s62, {XFL}")
    a("v_lshlrev_b32 v40, 3, v2"); a("s_lshl_b32 s63, s40, 9"); a("s_add_u32 s63, s63, s62")
    a("v_mov_b32 v42, 0"); a("v_mov_b32 v43, 0"); a("v_mov_b32 v44, 1")
    a("buffer_store_dwordx2 v[42:43], v40, s[56:59], s63 offen sc1"); q.issue()
    def issueA(s):
        for j in range(8):
            a(f"s_add_u32 m0, s42, {((s + 2) % 3) * REG + j*1024}")
            if j == 0: a("s_add_u32 s46, s41, 128")
            elif j == 1: a("s_and_b32 s46, s46, 2047")
            else: a("s_nop 0")
            a(f"buffer_load_dwordx4 v{8+j}, s[24:27], s41 offen lds")
            q.issue(("a", s) if j == 7 else None)
        a("s_mov_b32 s41, s46")
    tsched = {}
    if P.t1:
        for it in P.t1.split(","):
            w, u = it.split(":"); tsched.setdefault(int(w), []).append(int(u))
    t2sched = {}
    if P.t2:
        for it in P.t2.split(","):
            w, u = it.split(":"); t2sched.setdefault(int(w), []).append(int(u))
    def touch_setup():
        a("s_cmp_eq_u32 s40, 0")
        a("s_cselect_b32 s28, s4, s6"); a("s_cselect_b32 s29, s5, s7"); a("s_and_b32 s29, s29, 0xffff")
        a(f"s_mov_b32 s30, {X_BYTES}"); a("s_cmp_eq_u32 s40, 1"); a(f"s_cselect_b32 s30, {W1_BYTES}, s30"); a("s_mov_b32 s31, 0x20000")
        a("s_movk_i32 s52, 256"); a(f"s_cselect_b32 s52, {128*7168}, s52")
        a("v_and_b32 v20, 7, v2"); a("v_lshlrev_b32 v20, 11, v20"); a("v_bfe_u32 v21, v2, 3, 1"); a("v_lshl_add_u32 v20, v21, 7, v20")
        a("s_lshl_b32 s50, s2, 14"); a("v_add_u32 v20, s50, v20")
        a("v_min_u32 v21, 27, v2"); a("v_lshlrev_b32 v21, 7, v21")
        a("s_lshr_b32 s50, s2, 1"); a("s_mul_i32 s50, s50, 7168"); a("s_and_b32 s51, s2, 1"); a("s_mul_i32 s51, s51, 3584"); a("s_add_u32 s50, s50, s51")
        a("v_add_u32 v21, s50, v21")
        a("s_cmp_eq_u32 s40, 0"); a("s_cselect_b64 vcc, -1, 0"); a("v_cndmask_b32 v20, v21, v20, vcc")
    def touch(u):
        a(f"s_mul_i32 s50, s52, {u}")
        a(f"buffer_load_dword v22, v20, s[28:31], s50 offen"); q.issue()
    def touch2_setup():
        srd(a, 32, 10, W2_BYTES)
        a("v_lshrrev_b32 v24, 3, v2"); a("v_and_b32 v25, 7, v2"); a("v_lshlrev_b32 v25, 7, v25"); a("v_lshl_add_u32 v24, v24, 11, v25")
        a("s_lshr_b32 s53, s22, 2"); a(f"s_mul_i32 s53, s53, 1792"); a("s_lshl_b32 s54, s23, 4"); a("s_add_u32 s53, s53, s54")
        a("s_lshl_b32 s54, s40, 3"); a("s_add_u32 s53, s53, s54"); a("s_lshl_b32 s53, s53, 11")
        a("s_bfe_u32 s54, s22, 0x10001"); a("s_lshl_b32 s54, s54, 10"); a("s_add_u32 s53, s53, s54")
        if P.t2split:
            a("s_and_b32 s54, s22, 1"); a(f"s_mul_i32 s54, s54, {896*2048}"); a("s_add_u32 s53, s53, s54")
    def touch2(u):
        a(f"s_add_u32 s54, s53, {u*512*2048}")
        a(f"buffer_load_dword v26, v24, s[32:35], s54 offen"); q.issue()
    pf.stamp(2)
    issueA(0); issueA(1)
    if tsched: touch_setup()
    if t2sched: touch2_setup()
    for u in tsched.get(-1, []): touch(u)
    pf.stamp(3)
    for i in range(17):
        if i < 16: q.wait(("a", i))
        a("s_barrier")
        if i + 2 < 16 and i != 0 or i == 0: pass
        nxt = i + 2
        if nxt < 16: issueA(nxt)
        for u in tsched.get(i, []): touch(u)
        for u in t2sched.get(i, []): touch2(u)
    pf.stamp(4)
    a("s_cmp_eq_u32 s40, 1"); a("s_cbranch_scc1 L_AEND")
    a(f"s_mov_b32 s51, {SPIN if P.mark else 1}"); a("s_mov_b32 s52, " + ("16" if P.mark == 2 else "0x01010101"))
    a("v_lshlrev_b32 v3, 2, v2")
    a("s_mov_b64 exec, " + ("1" if P.mark == 2 else "15"))
    a.label("L_MARK")
    a("buffer_load_dword v6, v3, s[36:39], s60 offen sc1")
    a("s_sub_u32 s51, s51, 1")
    a("s_waitcnt vmcnt(0)")
    a(("v_cmp_gt_u32" if P.mark == 2 else "v_cmp_ne_u32") + " vcc, s52, v6")
    a("s_cbranch_vccz L_MARKD")
    a("s_cmp_lg_u32 s51, 0"); a("s_cbranch_scc1 L_MARK")
    a.label("L_MARKD")
    a("s_mov_b64 exec, 255")
    a("s_and_b32 s47, s21, 7"); a("v_sub_u32 v5, s47, v2"); a("v_and_b32 v5, 7, v5"); a("v_lshlrev_b32 v5, 2, v5"); a("v_lshl_add_u32 v5, v2, 10, v5")
    a("s_and_b32 s46, s61, 0xf8"); a("s_lshl_b32 s46, s46, 10"); a(f"s_add_u32 s46, s46, {XFL}")
    a("s_mov_b32 s48, 0")
    a("s_barrier")
    pf.stamp(5)
    np_ = [0]
    def poll(j):
        n = np_[0]; np_[0] += 1
        a(f"s_mov_b32 s51, {SPIN}")
        a.label(f"L_POLL{n}")
        a(f"s_bitcmp1_b32 s48, {j}"); a(f"s_cbranch_scc1 L_POLLD{n}")
        a("buffer_load_dword v6, v3, s[56:59], s62 offen sc1")
        a("s_sub_u32 s51, s51, 1")
        a("s_waitcnt vmcnt(0)")
        a("v_cmp_eq_u32 vcc, 1, v6")
        a("s_mov_b32 s48, vcc_lo")
        a("s_cmp_lg_u32 s51, 0"); a(f"s_cbranch_scc1 L_POLL{n}")
        a.label(f"L_POLLD{n}")
    iss = {}
    for v in range(7, U): iss[v] = max(v - PD, P.l1)
    have = 0
    for s in range(27):
        need = max([v // 7 for v in iss if iss[v] <= 2*s + 2] + [0])
        while have < need:
            have += 1; poll(have)
            if have == 1: pf.stamp(6)
        if have == 7 and not P.prof: break
        a("s_barrier")
    a.label("L_AEND")
    a("s_waitcnt vmcnt(0)")
    pf.dump(); a("s_endpgm")
    a.label("L_COMP")
    ACC = 128; XF = [32, 76]; WF = [48, 92]
    a("s_and_b32 s40, s3, 1"); a("s_lshr_b32 s41, s3, 1")
    a("v_and_b32 v12, 15, v2"); a("v_lshrrev_b32 v13, 4, v2")
    a("s_mul_i32 s42, s21, 448"); a("s_lshl_b32 s43, s41, 5"); a("s_add_u32 s43, s43, s42")
    a("s_lshl_b32 s44, s41, 8"); a("s_add_u32 s42, s42, s44")
    a("v_lshlrev_b32 v14, 3, v13")
    a("s_lshl_b32 s62, s20, 4"); a("s_add_u32 s62, s62, s21"); a("s_lshl_b32 s62, s62, 2"); a("s_add_u32 s62, s62, s3")
    a("s_lshr_b32 s63, s62, 2"); a("s_lshl_b32 s63, s63, 3"); a("s_add_u32 s63, s63, s3"); a("s_lshl_b32 s63, s63, 7"); a(f"s_add_u32 s63, s63, {XFL + 128}")
    a("s_waitcnt lgkmcnt(0)")
    srd(a, 28, 8, F * 2)
    for nt in range(7):
        a(f"buffer_load_dwordx2 {vr(XF[1] + nt*2, 2)}, v14, s[28:31], {'s42' if nt < 6 else 's43'} offen offset:{nt*32}")
    srd(a, 32, 18, WS_SZ)
    a("v_and_b32 v15, 7, v12"); a("v_xor_b32 v15, v15, v13"); a("v_lshlrev_b32 v15, 4, v15"); a("v_lshl_add_u32 v15, v12, 7, v15")
    a("s_lshl_b32 s43, s40, 13"); a(f"s_add_u32 s43, s43, {2*REG}")
    a("v_add_u32 v4, s43, v15"); a("v_xor_b32 v5, 64, v4")
    a("v_lshlrev_b32 v15, 12, v13")
    a("v_bfe_u32 v16, v2, 2, 2"); a("v_lshl_add_u32 v15, v16, 6, v15")
    a("v_and_b32 v16, 3, v2"); a("v_lshl_add_u32 v15, v16, 3, v15")
    a("v_and_b32 v16, 1, v13"); a("v_lshl_add_u32 v15, v16, 5, v15")
    a("s_lshl_b32 s44, s41, 10"); a(f"s_add_u32 s44, s44, {2*REG + 16384}")
    a("v_add_u32 v6, s44, v15"); a("v_xor_b32 v7, 32, v6")
    a("s_lshl_b32 s44, s41, 5"); a("v_xor_b32 v15, s44, v15"); a(f"v_add_u32 v8, {2*REG + 16384}, v15")
    a(f"s_mov_b32 s61, {2*REG}"); a("s_mov_b32 s60, 0")
    a("s_waitcnt vmcnt(0)")
    for nt in range(7):
        b = XF[1] + nt*2; t = ACC + nt*16
        a(f"v_lshlrev_b32 v{t}, 16, v{b}"); a(f"v_and_b32 v{t+1}, 0xffff0000, v{b}")
        a(f"v_lshlrev_b32 v{t+2}, 16, v{b+1}"); a(f"v_and_b32 v{t+3}, 0xffff0000, v{b+1}")
        for mt in range(1, 4):
            for r in (0, 2): a(f"v_pk_mov_b32 {vr(t+mt*4+r,2)}, {vr(t+r,2)}, {vr(t+r,2)} op_sel:[0,1]")
    def reads1(ks):
        out = []
        for mt in range(4):
            out.append(f"ds_read_b128 {vr(XF[ks] + mt*4, 4)}, v{4+ks} offset:{mt*2048}")
        for nt in range(7):
            for hf in range(2):
                out.append(f"ds_read_b64_tr_b16 {vr(WF[ks] + nt*4 + hf*2, 2)}, v{8 if nt == 6 else 6 + (nt&1)} offset:{(8*ks+hf)*2048 + (nt>>1)*256}")
        return out
    srd(a, 36, 16, 256)
    a("v_mov_b32 v18, 1"); a("v_mov_b32 v19, 0"); a("s_lshr_b32 s67, s62, 2")
    a("s_barrier")
    pf.st2(2,0)
    for r in reads1(0): a(r)
    a("s_cmp_lg_u32 s3, 0"); a("s_cbranch_scc1 L_LOOP1")
    if P.mark == 1: a("s_mov_b64 exec, 1"); a("buffer_store_byte v18, v19, s[36:39], s67 offen sc1"); a("s_mov_b64 exec, -1")
    if P.mark == 2: a("s_mov_b64 exec, 1"); a("s_lshl_b32 s68, s20, 4"); a("buffer_atomic_add v18, v19, s[36:39], s68 offen sc1"); a("s_mov_b64 exec, -1")
    a.label("L_LOOP1")
    for fs in [0, 1] * P.un1:
        a("s_waitcnt lgkmcnt(0)")
        if fs == 1: a("s_barrier")
        rd = reads1(1 - fs)
        if fs == 0:
            rd += [f"s_add_u32 s64, s61, {REG}", f"s_cmp_eq_u32 s64, {3*REG}", "s_cselect_b32 s64, 0, s64", "s_sub_u32 s65, s64, s61", "s_mov_b32 s61, s64",
                   "v_add_u32 v4, s65, v4", "v_add_u32 v6, s65, v6", "v_add_u32 v7, s65, v7", "v_add_u32 v8, s65, v8", "v_add_u32 v5, s65, v5"]
        else:
            rd += ["s_add_u32 s60, s60, 1", "s_cmp_lt_u32 s60, 16"]
        i = 0
        for nt in range(7):
            for mt in range(4):
                acc = vr(ACC + (nt*4+mt)*4, 4)
                a(f"v_mfma_f32_16x16x32_bf16 {acc}, {vr(WF[fs]+nt*4, 4)}, {vr(XF[fs]+mt*4, 4)}, {acc}")
                if i < len(rd): a(rd[i]); i += 1
        assert i == len(rd)
    a("s_cbranch_scc1 L_LOOP1")
    pf.st2(3,2)
    c0 = -2.0 * 0.7978845608028654 * 1.4426950408889634
    c1 = c0 * 0.044715
    a(f"s_mov_b32 s46, {f32(c1)}"); a(f"s_mov_b32 s47, {f32(c0)}")
    a("s_mul_i32 s48, s20, 112"); a("s_mul_i32 s49, s21, 7"); a("s_add_u32 s48, s48, s49")
    a("s_lshl_b32 s66, s48, 13")
    a("s_lshl_b32 s49, s40, 12"); a("s_add_u32 s48, s66, s49")
    a("v_lshlrev_b32 v14, 4, v2")
    a("s_lshl_b32 s49, s41, 3"); a("v_add_u32 v15, s49, v14")
    a("s_add_u32 s50, s48, %d" % (3*8192))
    a("s_lshl_b32 s49, s41, 15"); a("s_add_u32 s51, s48, s49")
    a("s_add_u32 s52, s51, 8192"); a("s_add_u32 s53, s51, 16384")
    a("s_waitcnt lgkmcnt(0)")
    a("s_nop 7")
    TMP = 32
    def gelu4(t, dst, tmp):
        for h in range(2):
            x = vr(t + 2*h, 2); u = vr(tmp + 2*h, 2); a(f"v_pk_mul_f32 {u}, {x}, {x}")
        for h in range(2):
            u = vr(tmp + 2*h, 2); a(f"v_pk_fma_f32 {u}, {u}, s[46:47], s[46:47] op_sel:[0,0,1] op_sel_hi:[1,0,1]")
        for h in range(2):
            x = vr(t + 2*h, 2); u = vr(tmp + 2*h, 2); a(f"v_pk_mul_f32 {u}, {u}, {x}")
        for j in range(4): a(f"v_exp_f32 v{tmp+j}, v{tmp+j}")
        for h in range(2):
            u = vr(tmp + 2*h, 2); a(f"v_pk_add_f32 {u}, {u}, 1.0 op_sel_hi:[1,0]")
        for j in range(4): a(f"v_rcp_f32 v{tmp+j}, v{tmp+j}")
        for h in range(2):
            x = vr(t + 2*h, 2); u = vr(tmp + 2*h, 2); a(f"v_pk_mul_f32 {u}, {u}, {x}")
        for h in range(2):
            a(f"v_cvt_pk_bf16_f32 v{dst+h}, v{tmp+2*h}, v{tmp+2*h+1}")
    k = 0
    for mt in range(4):
        dst = 64 + (k % 8) * 4; k += 1
        gelu4(ACC + (6*4+mt)*4, dst, TMP)
        a(f"buffer_store_dwordx2 {vr(dst,2)}, v15, s[32:35], s50 offen offset:{mt*1024} sc1")
    for pi in range(3):
        for mt in range(4):
            dst = 64 + (k % 8) * 4; k += 1
            gelu4(ACC + (2*pi*4+mt)*4, dst, TMP)
            gelu4(ACC + ((2*pi+1)*4+mt)*4, dst + 2, TMP + 4)
            a(f"buffer_store_dwordx4 {vr(dst,4)}, v14, s[32:35], s{51+pi} offen offset:{mt*1024} sc1")
    pf.st2(0,3)
    A2 = 32; W2 = [96, 128]; HF = 160
    a("s_lshr_b32 s40, s21, 3")
    a("s_and_b32 s41, s21, 7")
    a("s_lshl_b32 s42, s3, 11"); a("s_lshl_b32 s43, s40, 10"); a("s_add_u32 s42, s42, s43")
    a("v_add_u32 v16, s42, v14"); a("v_xor_b32 v17, 1024, v16")
    a("s_mul_i32 s44, s20, 112"); a("s_mul_i32 s45, s40, 56"); a("s_add_u32 s44, s44, s45"); a("s_lshl_b32 s44, s44, 13")
    a(f"s_add_u32 s45, s44, {56*8192}")
    a("v_lshrrev_b32 v15, 2, v2"); a("v_lshlrev_b32 v3, 8, v15")
    a("v_and_b32 v15, 7, v15"); a("v_lshl_add_u32 v3, v15, 5, v3")
    a("v_and_b32 v15, 3, v2"); a("v_lshl_add_u32 v4, v15, 3, v3")
    for nt in range(1, 8): a(f"v_xor_b32 v{4+nt}, {nt*32}, v4")
    a("v_sub_u32 v19, s41, v2"); a("v_and_b32 v19, 7, v19"); a("v_lshlrev_b32 v19, 2, v19"); a("v_lshl_add_u32 v19, v2, 10, v19")
    a("s_and_b32 s46, s67, 0xf8"); a("s_lshl_b32 s46, s46, 10"); a(f"s_add_u32 s46, s46, {XFL}")
    a("s_waitcnt vmcnt(0)")
    a("s_cmp_lg_u32 s3, 0")
    a("s_barrier")
    a("s_cbranch_scc1 L_NOPUB")
    a("s_mov_b64 exec, 255"); a("buffer_store_dword v18, v19, s[32:35], s46 offen sc1"); a("s_mov_b64 exec, -1")
    a.label("L_NOPUB")
    pf.st2(4,0)
    q = VmQ(a)
    def hload(v):
        a(f"buffer_load_dwordx4 {vr(HF + (v % PD)*8, 4)}, v16, s[32:35], s66 offen sc1"); q.issue()
        a(f"buffer_load_dwordx4 {vr(HF + (v % PD)*8 + 4, 4)}, v17, s[32:35], s66 offen sc1"); q.issue(("h", v))
        a("s_add_u32 s66, s66, 8192"); a("s_cmp_eq_u32 s66, s45"); a("s_cselect_b32 s66, s44, s66")
    def reads2(u):
        out = []
        base = ((u >> 1) & 3) * 16384 + (u & 1) * 8192
        for nt in range(8):
            for hf in range(2):
                r = f"ds_read_b64_tr_b16 {vr(W2[u & 1] + nt*4 + hf*2, 2)}, v{4+nt} offset:{base + hf*4096}"
                if u % 8 == 0 and u > 0 and hf == 0: r = f"v_xor_b32 v{4+nt}, 0x10000, v{4+nt}\n    " + r
                out.append(r)
        return out
    for v in range(7): hload(v)
    for r in reads2(0): a(r)
    for i in range(0, 64, 2): a(f"v_pk_mov_b32 {vr(A2+i,2)}, 0, 0")
    srd(a, 28, 12, D * 2); srd(a, 36, 14, OUT_BYTES)
    def step(u, first=False):
        a("s_waitcnt lgkmcnt(0)")
        if (u & 1) and u + 1 < U: a("s_barrier")
        q.wait(("h", u))
        rd = reads2(u + 1) if u + 1 < U else []
        i = 0
        for nt in range(8):
            for mt in range(2):
                acc = vr(A2 + (nt*2+mt)*4, 4)
                a(f"v_mfma_f32_16x16x32_bf16 {acc}, {vr(W2[u&1]+nt*4, 4)}, {vr(HF + (u % PD)*8 + mt*4, 4)}, {acc}")
                if i < len(rd): a(rd[i]); i += 1
        for v in range(7, U):
            if iss[v] == u: hload(v)
    for u in range(8): step(u)
    pf.st2(5,0)
    a("s_mov_b32 s60, 0")
    a.label("L_LOOP2")
    for u in range(8, 16): step(u)
    a("s_add_u32 s60, s60, 1"); a("s_cmp_lt_u32 s60, 5"); a("s_cbranch_scc1 L_LOOP2")
    for v in range(16, 24): q.tags[("h", v + 32)] = q.tags[("h", v)]
    a("s_lshl_b32 s42, s41, 8"); a("v_lshlrev_b32 v14, 3, v13")
    for u in range(48, 56):
        step(u)
        if u == 48:
            for nt in range(8):
                a(f"buffer_load_dwordx2 {vr(224 + nt*2, 2)}, v14, s[28:31], s42 offen offset:{nt*32}"); q.issue()
    pf.st2(6,4)
    a("v_lshlrev_b32 v15, 4, v2")
    a("s_lshl_b32 s46, s62, 13"); a(f"s_add_u32 s46, s46, {XCH}"); a("s_add_u32 s47, s46, 4096")
    a("s_xor_b32 s48, s46, %d" % (8*4*8192)); a("s_add_u32 s49, s48, 4096")
    a("s_xor_b32 s50, s63, 8192")
    a("v_mov_b32 v3, 0"); a("v_mov_b32 v18, 1")
    a("s_nop 7")
    for nt in range(8):
        a(f"buffer_store_dwordx4 {vr(A2 + (nt*2+1)*4, 4)}, v15, s[32:35], s{46 + nt//4} offen offset:{(nt%4)*1024} sc1")
    a("s_lshl_b32 s42, s20, 7"); a("s_lshl_b32 s43, s3, 5"); a("s_add_u32 s42, s42, s43"); a("s_lshl_b32 s43, s40, 4"); a("s_add_u32 s42, s42, s43")
    a("s_lshl_b32 s42, s42, 11"); a("s_lshl_b32 s43, s41, 8"); a("s_add_u32 s42, s42, s43")
    a("v_lshl_add_u32 v16, v12, 11, v14")
    a("s_waitcnt vmcnt(8)")
    for nt in range(8):
        t = A2 + nt*8; b = 224 + nt*2; tb = 96
        a(f"v_lshlrev_b32 v{tb}, 16, v{b}"); a(f"v_and_b32 v{tb+1}, 0xffff0000, v{b}")
        a(f"v_lshlrev_b32 v{tb+2}, 16, v{b+1}"); a(f"v_and_b32 v{tb+3}, 0xffff0000, v{b+1}")
        for r in (0, 2): a(f"v_pk_add_f32 {vr(t+r,2)}, {vr(t+r,2)}, {vr(tb+r,2)}")
    a("s_waitcnt vmcnt(0)")
    pf.st2(0,5)
    a("buffer_store_dword v18, v3, s[32:35], s50 offen sc1")
    a(f"s_mov_b32 s51, {SPIN}")
    a.label("L_XPOLL")
    a("buffer_load_dword v19, v3, s[32:35], s63 offen sc1")
    a("s_sub_u32 s51, s51, 1")
    a("s_waitcnt vmcnt(0)")
    a("v_readfirstlane_b32 s52, v19")
    a("s_cmp_eq_u32 s52, 1"); a("s_cbranch_scc1 L_XDONE")
    a("s_cmp_lg_u32 s51, 0"); a("s_cbranch_scc1 L_XPOLL")
    a.label("L_XDONE")
    pf.st2(0,6)
    for nt in range(8):
        a(f"buffer_load_dwordx4 {vr(HF + nt*4, 4)}, v15, s[32:35], s{48 + nt//4} offen offset:{(nt%4)*1024} sc1")
    for nt in range(8):
        t = A2 + nt*8; p = HF + nt*4
        a(f"s_waitcnt vmcnt({7})")
        for r in (0, 2): a(f"v_pk_add_f32 {vr(t+r,2)}, {vr(t+r,2)}, {vr(p+r,2)}")
        a(f"v_cvt_pk_bf16_f32 v{p}, v{t}, v{t+1}"); a(f"v_cvt_pk_bf16_f32 v{p+1}, v{t+2}, v{t+3}")
        a(f"buffer_store_dwordx2 {vr(p,2)}, v16, s[36:39], s42 offen offset:{nt*32}")
    pf.dump()
    a.label("L_END")
    a("s_endpgm")
    return dict(vgpr=240, lds=3 * REG, block=512)

def main():
    ap = argparse.ArgumentParser()
    ap.add_argument("-o", default="f.s")
    ap.add_argument("--rot1", type=int, default=1)
    ap.add_argument("--t1", default="")
    ap.add_argument("--t2", default="13:0,13:1")
    ap.add_argument("--t2split", type=int, default=1)
    ap.add_argument("--l1", type=int, default=3)
    ap.add_argument("--un1", type=int, default=2)
    ap.add_argument("--mark", type=int, default=2)
    ap.add_argument("--prof", type=int, default=0)
    P = ap.parse_args()
    a = Asm()
    k = gen(a, P)
    hdr = ["; fused MLP: out = gelu(x@w1+b1)@w2+b2 ; h handed between workgroups through d_ws with per-producer flags in d_debug",
           f"; @launch grid=(256,1,1) block=({k['block']},1,1) lds={k['lds']}",
           '.amdgcn_target "amdgcn-amd-amdhsa--gfx950"', ".text", f".globl {KN}"]
    tail = ['.section .rodata,"a"', ".p2align 6", f".amdhsa_kernel {KN}",
            f"  .amdhsa_next_free_vgpr {k['vgpr']}", "  .amdhsa_next_free_sgpr 102",
            f"  .amdhsa_accum_offset {k['vgpr']}", "  .amdhsa_group_segment_fixed_size 0",
            "  .amdhsa_kernarg_size 64", "  .amdhsa_user_sgpr_count 2",
            "  .amdhsa_user_sgpr_kernarg_segment_ptr 1", "  .amdhsa_system_sgpr_workgroup_id_x 1",
            ".end_amdhsa_kernel"]
    open(P.o, "w").write("\n".join(hdr) + "\n" + a.text() + "\n".join(tail) + "\n")

if __name__ == "__main__":
    main()
```

```python
import sys, argparse, struct
from gen import Asm, vr, sr, srd, VmQ, f32, S, D, F, X_BYTES, W1_BYTES, W2_BYTES, H_BYTES, OUT_BYTES

KN = "standalone__dense_activation_gelu__prompt_kernel"
WS_SZ = 64 << 20
XCH = 32 << 20
XFL = 48 << 20
PROF_BASE = 64 << 20

class Prof:
    def __init__(self, a, on):
        self.a = a; self.on = on
    def st2(self, i1, i2, i3=0):
        i = i1 if self.on == 1 else i2 if self.on == 2 else i3
        if self.on and i: self.a(f"s_memtime s[{70+2*i}:{71+2*i}]")
    def stamp(self, i):
        if self.on: self.a(f"s_memtime s[{70+2*i}:{71+2*i}]")
    def rt(self, i):
        if self.on: self.a(f"s_memrealtime s[{70+2*i}:{71+2*i}]")
    def dump(self):
        if not self.on: return
        a = self.a
        a("s_mov_b64 exec, -1")
        a("s_waitcnt vmcnt(0)")
        a("s_memtime s[84:85]"); a("s_memrealtime s[86:87]")
        a("s_waitcnt lgkmcnt(0)")
        a("s_mov_b32 s92, s18"); a("s_and_b32 s93, s19, 0xffff"); a("s_mov_b32 s94, 0x10000000"); a("s_mov_b32 s95, 0x20000")
        a("s_lshl_b32 s90, s2, 4"); a("s_add_u32 s90, s90, s3"); a("s_lshl_b32 s90, s90, 6")
        a(f"s_add_u32 s90, s90, {PROF_BASE}")
        a("v_mov_b32 v1, 0")
        for i in range(9):
            a(f"v_mov_b32 v0, s{70+2*i}")
            a(f"buffer_store_dword v0, v1, s[92:95], s90 offen offset:{4*i}")
        a("s_waitcnt vmcnt(0)")

def gen(a, P):
    REG = 49152
    NST1 = 16
    NST2 = 28; NB2 = 8; PD = 8; U = 56
    SPIN = 40000
    a.raw(".p2align 8"); a.raw(f".type {KN},@function"); a.label(KN)
    a("s_cmp_ge_u32 s2, 256"); a("s_cbranch_scc1 L_END")
    pf = Prof(a, P.prof)
    pf.rt(0); pf.stamp(1)
    a("s_load_dwordx8 s[4:11], s[0:1], 0")
    a("s_load_dwordx8 s[12:19], s[0:1], 32")
    a("v_lshrrev_b32 v1, 6, v0"); a("v_and_b32 v2, 63, v0"); a("v_readfirstlane_b32 s3, v1")
    a("s_and_b32 s22, s2, 7"); a("s_lshr_b32 s23, s2, 3")
    a("s_and_b32 s20, s22, 1"); a("s_lshl_b32 s20, s20, 3"); a("s_and_b32 s21, s23, 7"); a("s_add_u32 s20, s20, s21")
    a("s_lshr_b32 s21, s22, 1"); a("s_lshl_b32 s21, s21, 2"); a("s_lshr_b32 s40, s23, 3"); a("s_add_u32 s21, s21, s40")
    a("s_cmp_lt_u32 s3, 4"); a("s_cbranch_scc1 L_COMP")
    if P.rot1 == 0: a("s_mov_b32 s41, 0")
    elif P.rot1 == 1: a("s_add_u32 s41, s20, s21"); a("s_and_b32 s41, s41, 15")
    else:
        a("s_lshr_b32 s41, s22, 1"); a("s_lshl_b32 s41, s41, 2"); a("s_lshl_b32 s42, s22, 3"); a("s_add_u32 s41, s41, s42")
        if P.rot1 == 3: a("s_add_u32 s42, s20, s21"); a("s_and_b32 s42, s42, 1"); a("s_lshl_b32 s42, s42, 1"); a("s_add_u32 s41, s41, s42")
        a("s_and_b32 s41, s41, 15")
    a("s_and_b32 s40, s3, 1")
    a("s_cmp_gt_u32 s3, 5"); a("s_cbranch_scc1 L_LOADA")
    a("v_bfe_u32 v4, v2, 2, 2"); a("v_mul_u32_u24 v4, 7168, v4")
    a("v_lshrrev_b32 v3, 4, v2"); a("v_lshl_add_u32 v4, v3, 6, v4")
    a("v_and_b32 v5, 3, v2"); a("v_lshl_add_u32 v4, v5, 4, v4")
    a("s_mul_i32 s44, s21, 448"); a("s_lshl_b32 s45, s40, 8"); a("s_add_u32 s44, s44, s45")
    a("v_add_u32 v8, s44, v4"); a("v_xor_b32 v4, 32, v8")
    for j in range(1, 16): a(f"v_add_u32 v{8+j}, {j*28672}, " + ("v4" if j & 2 else "v8"))
    KS = 64 * 7168
    a(f"s_mul_i32 s41, s41, {KS}")
    a("s_lshl_b32 s42, s40, 10"); a(f"s_add_u32 s42, s42, 16384")
    a("s_lshl_b32 s45, s40, 4"); a("s_lshr_b32 s45, -1, s45"); a("s_mov_b32 exec_hi, s45")
    a("s_waitcnt lgkmcnt(0)")
    srd(a, 24, 6, W1_BYTES)
    q = VmQ(a)
    def sched(txt):
        d = {}
        if txt:
            for it in txt.split(","):
                w, u = it.split(":"); d.setdefault(int(w), []).append(int(u))
        return d
    tsched = sched(P.t1); t2sched = sched(P.t2)
    def touch_setup():
        a("s_cmp_eq_u32 s40, 0")
        a("s_cselect_b32 s32, s4, s6"); a("s_cselect_b32 s33, s5, s7"); a("s_and_b32 s33, s33, 0xffff")
        a(f"s_mov_b32 s34, {X_BYTES}"); a("s_cmp_eq_u32 s40, 1"); a(f"s_cselect_b32 s34, {W1_BYTES}, s34"); a("s_mov_b32 s35, 0x20000")
        a("s_movk_i32 s52, 256"); a(f"s_cselect_b32 s52, {128*7168}, s52")
        a("v_and_b32 v24, 7, v2"); a("v_lshlrev_b32 v24, 11, v24"); a("v_bfe_u32 v25, v2, 3, 1"); a("v_lshl_add_u32 v24, v25, 7, v24")
        a("s_lshl_b32 s50, s2, 14"); a("v_add_u32 v24, s50, v24")
        a("v_min_u32 v25, 27, v2"); a("v_lshlrev_b32 v25, 7, v25")
        a("s_lshr_b32 s50, s2, 1"); a("s_mul_i32 s50, s50, 7168"); a("s_and_b32 s51, s2, 1"); a("s_mul_i32 s51, s51, 3584"); a("s_add_u32 s50, s50, s51")
        a("v_add_u32 v25, s50, v25")
        a("s_cmp_eq_u32 s40, 0"); a("s_cselect_b64 vcc, -1, 0"); a("v_cndmask_b32 v24, v25, v24, vcc")
    def touch(u):
        a(f"s_mul_i32 s50, s52, {u}")
        a(f"buffer_load_dword v26, v24, s[32:35], s50 offen"); q.issue()
    def touch2_setup():
        a("v_bfe_u32 v27, v2, 3, 2"); a("v_and_b32 v25, 7, v2"); a("v_lshlrev_b32 v25, 7, v25"); a("v_lshl_add_u32 v27, v27, 11, v25")
        a("s_lshr_b32 s53, s22, 2"); a(f"s_mul_i32 s53, s53, 1792"); a("s_lshl_b32 s54, s23, 3"); a("s_add_u32 s53, s53, s54")
        a("s_lshl_b32 s54, s40, 2"); a("s_add_u32 s53, s53, s54")
        a("s_and_b32 s54, s22, 1"); a(f"s_mul_i32 s54, s54, 896"); a("s_add_u32 s53, s53, s54"); a("s_lshl_b32 s53, s53, 11")
        a("s_bfe_u32 s54, s22, 0x10001"); a("s_lshl_b32 s54, s54, 10"); a("s_add_u32 s53, s53, s54")
    def touch2(u):
        a(f"s_add_u32 s54, s53, {u*256*2048}")
        a(f"buffer_load_dword v26, v27, s[28:31], s54 offen"); q.issue()
    def issueB(s):
        for j in range(16):
            a(f"s_add_u32 m0, s42, {((s + 2) % 3) * REG + j*2048}")
            if j == 0: a(f"s_add_u32 s46, s41, {KS}")
            elif j == 1: a(f"s_cmp_eq_u32 s46, {16*KS}")
            else: a("s_nop 0")
            a(f"buffer_load_dwordx4 v{8+j}, s[24:27], s41 offen lds")
            q.issue(("a", s) if j == 15 else None)
            if j == 1: a("s_cselect_b32 s46, 0, s46")
        a("s_mov_b32 s41, s46")
    pf.stamp(2)
    for i in range(16):
        if i >= 2: q.wait(("a", i - 2)); a("s_barrier")
        issueB(i)
        if i == 0:
            srd(a, 28, 10, W2_BYTES)
            if tsched: touch_setup()
        if i == 2 and t2sched: touch2_setup()
        for u in tsched.get(i, []): touch(u)
        for u in t2sched.get(i, []): touch2(u)
    pf.stamp(3)
    a("s_mov_b64 exec, -1")
    a("v_lshrrev_b32 v3, 4, v2")
    a("v_bfe_u32 v4, v2, 1, 3"); a("v_lshlrev_b32 v5, 1, v3"); a("v_xor_b32 v4, v4, v5"); a("v_lshlrev_b32 v4, 5, v4")
    a("v_and_b32 v5, 1, v2"); a("v_lshl_add_u32 v4, v5, 4, v4")
    a("v_lshl_add_u32 v4, v3, 11, v4")
    a("s_lshr_b32 s44, s21, 3"); a(f"s_mul_i32 s44, s44, {1792*2048}")
    a("s_and_b32 s45, s21, 7"); a("s_lshl_b32 s46, s45, 8"); a("s_add_u32 s44, s44, s46")
    a("v_add_u32 v30, s44, v4")
    for j in range(1, 8): a(f"v_add_u32 v{30+j}, {j*8192}, v30")
    a("s_mul_i32 s41, s45, 7"); a("s_add_u32 s41, s41, s40"); a("s_lshl_b32 s41, s41, 16")
    a("s_lshl_b32 s42, s40, 13")
    a("v_lshlrev_b32 v38, 4, v2"); a("v_add_u32 v38, s42, v38"); a("v_add_u32 v39, 0x10000, v38")
    NR = P.nr
    def issueW(s, loop=False):
        reg = (not loop) and 8 <= s < 8 + NR
        for j in range(8):
            if not reg: a(f"s_add_u32 m0, s42, {(0 if loop else (s % NB2) * 16384) + j*1024}")
            if j == 0: a(f"s_add_u32 s46, s41, {2*65536}")
            elif j == 1: a(f"s_sub_u32 s48, s46, {56*65536}")
            elif j == 2: a(f"s_cmp_ge_u32 s46, {56*65536}")
            elif not reg: a("s_nop 0")
            if not loop and q.n - q.done >= 63:
                a("s_waitcnt vmcnt(55)"); q.done = q.n - 55
            if reg: a(f"buffer_load_dwordx4 {vr(40 + (s-8)*32 + j*4, 4)}, v{30+j}, s[28:31], s41 offen")
            else: a(f"buffer_load_dwordx4 v{30+j}, s[28:31], s41 offen lds")
            if j == 2: a("s_cselect_b32 s46, s48, s46")
            if not loop: q.issue(("w", s) if j == 7 else None)
        a("s_mov_b32 s41, s46")
    q.wait(("a", 14)); a("s_barrier")
    for s in (0, 1, 2): issueW(s)
    q.wait(("a", 15)); a("s_barrier")
    for u in t2sched.get(16, []): touch2(u)
    for s in (3, 4, 5): issueW(s)
    a("s_barrier")
    for u in t2sched.get(17, []): touch2(u)
    for s in range(6, 8 + NR): issueW(s)
    for u in t2sched.get(18, []): touch2(u)
    q.wait(("w", 0))
    pf.stamp(4)
    a("s_barrier")
    pf.stamp(5)
    q.wait(("w", 1)); a("s_barrier")
    for s in range(1, NR + 1):
        q.wait(("w", s + 1)); a("s_barrier")
        q.wait(("w", s + 7))
        for j in range(8):
            a(f"ds_write_b128 v{38 + ((s-1) >> 2)}, {vr(40 + (s-1)*32 + j*4, 4)} offset:{((s-1) & 3)*16384 + j*1024}")
    a(f"s_add_u32 s42, s42, {NR*16384}")
    a(f"s_mov_b32 s47, {NR + 1}")
    a("s_waitcnt lgkmcnt(0)")
    a.label("L_WLOOP")
    a("s_waitcnt vmcnt(40)"); a("s_barrier")
    issueW(0, True)
    a("s_add_u32 s42, s42, 16384"); a("s_and_b32 s42, s42, 0x1ffff")
    a("s_add_u32 s47, s47, 1"); a("s_cmp_lt_u32 s47, 21"); a("s_cbranch_scc1 L_WLOOP")
    for s in range(21, 27):
        a(f"s_waitcnt vmcnt({(26 - s) * 8})"); a("s_barrier")
    pf.dump(); a("s_endpgm")
    a.label("L_LOADA")
    a("v_lshrrev_b32 v3, 3, v2")
    a("v_and_b32 v4, 7, v2"); a("v_xor_b32 v4, v4, v3"); a("v_lshlrev_b32 v4, 4, v4")
    a("v_lshl_add_u32 v4, v3, 11, v4")
    a("s_lshl_b32 s44, s20, 18"); a("s_lshl_b32 s45, s40, 17"); a("s_add_u32 s44, s44, s45")
    a("v_add_u32 v8, s44, v4")
    for j in range(1, 8): a(f"v_add_u32 v{8+j}, {j*16384}, v8")
    a("s_lshl_b32 s41, s41, 7")
    a("s_lshl_b32 s42, s40, 13")
    a("s_waitcnt lgkmcnt(0)")
    srd(a, 24, 4, X_BYTES)
    q = VmQ(a)
    srd(a, 36, 16, 256)
    srd(a, 56, 18, WS_SZ)
    a("s_lshl_b32 s60, s20, 4"); a("s_add_u32 s61, s60, s21")
    a("s_lshl_b32 s62, s61, 10"); a(f"s_add_u32 s62, s62, {XFL}")
    a("v_lshlrev_b32 v40, 3, v2"); a("s_lshl_b32 s63, s40, 9"); a("s_add_u32 s63, s63, s62")
    a("v_mov_b32 v42, 0"); a("v_mov_b32 v43, 0"); a("v_mov_b32 v44, 1")
    a("buffer_store_dwordx2 v[42:43], v40, s[56:59], s63 offen sc1"); q.issue()
    def issueA(s):
        for j in range(8):
            a(f"s_add_u32 m0, s42, {((s + 2) % 3) * REG + j*1024}")
            if j == 0: a("s_add_u32 s46, s41, 128")
            elif j == 1: a("s_and_b32 s46, s46, 2047")
            else: a("s_nop 0")
            a(f"buffer_load_dwordx4 v{8+j}, s[24:27], s41 offen lds")
            q.issue(("a", s) if j == 7 else None)
        a("s_mov_b32 s41, s46")
    pf.stamp(2)
    issueA(0); issueA(1)
    pf.stamp(3)
    for i in range(17):
        if i < 16: q.wait(("a", i))
        a("s_barrier")
        if i + 2 < 16 and i != 0 or i == 0: pass
        nxt = i + 2
        if nxt < 16: issueA(nxt)
    pf.stamp(4)
    a("s_cmp_eq_u32 s40, 1"); a("s_cbranch_scc1 L_AEND")
    a(f"s_mov_b32 s51, {SPIN if P.mark else 1}"); a("s_mov_b32 s52, " + ("16" if P.mark == 2 else "0x01010101"))
    a("v_lshlrev_b32 v3, 2, v2")
    a("s_mov_b64 exec, " + ("1" if P.mark == 2 else "15"))
    a.label("L_MARK")
    a("buffer_load_dword v6, v3, s[36:39], s60 offen sc1")
    a("s_sub_u32 s51, s51, 1")
    a("s_waitcnt vmcnt(0)")
    a(("v_cmp_gt_u32" if P.mark == 2 else "v_cmp_ne_u32") + " vcc, s52, v6")
    a("s_cbranch_vccz L_MARKD")
    a("s_cmp_lg_u32 s51, 0"); a("s_cbranch_scc1 L_MARK")
    a.label("L_MARKD")
    a("s_mov_b64 exec, 255")
    a("s_and_b32 s47, s21, 7"); a("v_sub_u32 v5, s47, v2"); a("v_and_b32 v5, 7, v5"); a("v_lshlrev_b32 v5, 2, v5"); a("v_lshl_add_u32 v5, v2, 10, v5")
    a("s_and_b32 s46, s61, 0xf8"); a("s_lshl_b32 s46, s46, 10"); a(f"s_add_u32 s46, s46, {XFL}")
    a("s_mov_b32 s48, 0")
    a("s_barrier")
    pf.stamp(5)
    np_ = [0]
    def poll(j):
        n = np_[0]; np_[0] += 1
        a(f"s_mov_b32 s51, {SPIN}")
        a.label(f"L_POLL{n}")
        a(f"s_bitcmp1_b32 s48, {j}"); a(f"s_cbranch_scc1 L_POLLD{n}")
        a("buffer_load_dword v6, v3, s[56:59], s62 offen sc1")
        a("s_sub_u32 s51, s51, 1")
        a("s_waitcnt vmcnt(0)")
        a("v_cmp_eq_u32 vcc, 1, v6")
        a("s_mov_b32 s48, vcc_lo")
        a("s_cmp_lg_u32 s51, 0"); a(f"s_cbranch_scc1 L_POLL{n}")
        a.label(f"L_POLLD{n}")
    iss = {}
    for v in range(7, U): iss[v] = max(v - PD, P.l1)
    have = 0
    for s in range(27):
        need = max([v // 7 for v in iss if iss[v] <= 2*s + 2] + [0])
        while have < need:
            have += 1; poll(have)
            if have == 1: pf.stamp(6)
        if have == 7 and not P.prof: break
        a("s_barrier")
    a.label("L_AEND")
    a("s_waitcnt vmcnt(0)")
    pf.dump(); a("s_endpgm")
    a.label("L_COMP")
    ACC = 128; XF = [32, 76]; WF = [48, 92]
    a("s_and_b32 s40, s3, 1"); a("s_lshr_b32 s41, s3, 1")
    a("v_and_b32 v12, 15, v2"); a("v_lshrrev_b32 v13, 4, v2")
    a("s_mul_i32 s42, s21, 448"); a("s_lshl_b32 s43, s41, 5"); a("s_add_u32 s43, s43, s42")
    a("s_lshl_b32 s44, s41, 8"); a("s_add_u32 s42, s42, s44")
    a("v_lshlrev_b32 v14, 3, v13")
    a("s_lshl_b32 s62, s20, 4"); a("s_add_u32 s62, s62, s21"); a("s_lshl_b32 s62, s62, 2"); a("s_add_u32 s62, s62, s3")
    a("s_lshr_b32 s63, s62, 2"); a("s_lshl_b32 s63, s63, 3"); a("s_add_u32 s63, s63, s3"); a("s_lshl_b32 s63, s63, 7"); a(f"s_add_u32 s63, s63, {XFL + 128}")
    a("s_waitcnt lgkmcnt(0)")
    srd(a, 28, 8, F * 2)
    for nt in range(7):
        a(f"buffer_load_dwordx2 {vr(XF[1] + nt*2, 2)}, v14, s[28:31], {'s42' if nt < 6 else 's43'} offen offset:{nt*32}")
    srd(a, 32, 18, WS_SZ)
    a("v_and_b32 v15, 7, v12"); a("v_xor_b32 v15, v15, v13"); a("v_lshlrev_b32 v15, 4, v15"); a("v_lshl_add_u32 v15, v12, 7, v15")
    a("s_lshl_b32 s43, s40, 13"); a(f"s_add_u32 s43, s43, {2*REG}")
    a("v_add_u32 v4, s43, v15"); a("v_xor_b32 v5, 64, v4")
    a("v_lshlrev_b32 v15, 12, v13")
    a("v_bfe_u32 v16, v2, 2, 2"); a("v_lshl_add_u32 v15, v16, 6, v15")
    a("v_and_b32 v16, 3, v2"); a("v_lshl_add_u32 v15, v16, 3, v15")
    a("v_and_b32 v16, 1, v13"); a("v_lshl_add_u32 v15, v16, 5, v15")
    a("s_lshl_b32 s44, s41, 10"); a(f"s_add_u32 s44, s44, {2*REG + 16384}")
    a("v_add_u32 v6, s44, v15"); a("v_xor_b32 v7, 32, v6")
    a("s_lshl_b32 s44, s41, 5"); a("v_xor_b32 v15, s44, v15"); a(f"v_add_u32 v8, {2*REG + 16384}, v15")
    a(f"s_mov_b32 s61, {2*REG}"); a("s_mov_b32 s60, 0")
    a("s_waitcnt vmcnt(0)")
    for nt in range(7):
        b = XF[1] + nt*2; t = ACC + nt*16
        a(f"v_lshlrev_b32 v{t}, 16, v{b}"); a(f"v_and_b32 v{t+1}, 0xffff0000, v{b}")
        a(f"v_lshlrev_b32 v{t+2}, 16, v{b+1}"); a(f"v_and_b32 v{t+3}, 0xffff0000, v{b+1}")
        for mt in range(1, 4):
            for r in (0, 2): a(f"v_pk_mov_b32 {vr(t+mt*4+r,2)}, {vr(t+r,2)}, {vr(t+r,2)} op_sel:[0,1]")
    def reads1(ks):
        out = []
        for mt in range(4):
            out.append(f"ds_read_b128 {vr(XF[ks] + mt*4, 4)}, v{4+ks} offset:{mt*2048}")
        for nt in range(7):
            for hf in range(2):
                out.append(f"ds_read_b64_tr_b16 {vr(WF[ks] + nt*4 + hf*2, 2)}, v{8 if nt == 6 else 6 + (nt&1)} offset:{(8*ks+hf)*2048 + (nt>>1)*256}")
        return out
    srd(a, 36, 16, 256)
    a("v_mov_b32 v18, 1"); a("v_mov_b32 v19, 0"); a("s_lshr_b32 s67, s62, 2")
    a("s_barrier")
    pf.st2(2,0)
    for r in reads1(0): a(r)
    a("s_cmp_lg_u32 s3, 0"); a("s_cbranch_scc1 L_LOOP1")
    if P.mark == 1: a("s_mov_b64 exec, 1"); a("buffer_store_byte v18, v19, s[36:39], s67 offen sc1"); a("s_mov_b64 exec, -1")
    if P.mark == 2: a("s_mov_b64 exec, 1"); a("s_lshl_b32 s68, s20, 4"); a("buffer_atomic_add v18, v19, s[36:39], s68 offen sc1"); a("s_mov_b64 exec, -1")
    a.label("L_LOOP1")
    for fs in [0, 1] * P.un1:
        a("s_waitcnt lgkmcnt(0)")
        if fs == 1: a("s_barrier")
        rd = reads1(1 - fs)
        if fs == 0:
            rd += [f"s_add_u32 s64, s61, {REG}", f"s_cmp_eq_u32 s64, {3*REG}", "s_cselect_b32 s64, 0, s64", "s_sub_u32 s65, s64, s61", "s_mov_b32 s61, s64",
                   "v_add_u32 v4, s65, v4", "v_add_u32 v6, s65, v6", "v_add_u32 v7, s65, v7", "v_add_u32 v8, s65, v8", "v_add_u32 v5, s65, v5"]
        else:
            rd += ["s_add_u32 s60, s60, 1", "s_cmp_lt_u32 s60, 16"]
        i = 0
        for nt in range(7):
            for mt in range(4):
                acc = vr(ACC + (nt*4+mt)*4, 4)
                a(f"v_mfma_f32_16x16x32_bf16 {acc}, {vr(WF[fs]+nt*4, 4)}, {vr(XF[fs]+mt*4, 4)}, {acc}")
                if i < len(rd): a(rd[i]); i += 1
        assert i == len(rd)
    a("s_cbranch_scc1 L_LOOP1")
    pf.st2(3,2)
    c0 = -2.0 * 0.7978845608028654 * 1.4426950408889634
    c1 = c0 * 0.044715
    a(f"s_mov_b32 s46, {f32(c1)}"); a(f"s_mov_b32 s47, {f32(c0)}")
    a("s_mul_i32 s48, s20, 112"); a("s_mul_i32 s49, s21, 7"); a("s_add_u32 s48, s48, s49")
    a("s_lshl_b32 s66, s48, 13")
    a("s_lshl_b32 s49, s40, 12"); a("s_add_u32 s48, s66, s49")
    a("v_lshlrev_b32 v14, 4, v2")
    a("s_lshl_b32 s49, s41, 3"); a("v_add_u32 v15, s49, v14")
    a("s_add_u32 s50, s48, %d" % (3*8192))
    a("s_lshl_b32 s49, s41, 15"); a("s_add_u32 s51, s48, s49")
    a("s_add_u32 s52, s51, 8192"); a("s_add_u32 s53, s51, 16384")
    srd(a, 28, 12, D * 2)
    a("s_lshr_b32 s54, s21, 3"); a("s_lshl_b32 s54, s54, 7"); a("s_and_b32 s55, s21, 7"); a("s_lshl_b32 s55, s55, 8"); a("s_add_u32 s54, s54, s55")
    a("v_lshrrev_b32 v16, 5, v2"); a("v_lshlrev_b32 v16, 3, v16")
    a("s_waitcnt lgkmcnt(0)")
    for c in range(8):
        a(f"buffer_load_dwordx2 {vr(96 + c*2, 2)}, v16, s[28:31], s54 offen offset:{c*16}")
    TMP = 32
    def gelu4(t, dst, tmp):
        for h in range(2):
            x = vr(t + 2*h, 2); u = vr(tmp + 2*h, 2); a(f"v_pk_mul_f32 {u}, {x}, {x}")
        for h in range(2):
            u = vr(tmp + 2*h, 2); a(f"v_pk_fma_f32 {u}, {u}, s[46:47], s[46:47] op_sel:[0,0,1] op_sel_hi:[1,0,1]")
        for h in range(2):
            x = vr(t + 2*h, 2); u = vr(tmp + 2*h, 2); a(f"v_pk_mul_f32 {u}, {u}, {x}")
        for j in range(4): a(f"v_exp_f32 v{tmp+j}, v{tmp+j}")
        for h in range(2):
            u = vr(tmp + 2*h, 2); a(f"v_pk_add_f32 {u}, {u}, 1.0 op_sel_hi:[1,0]")
        for j in range(4): a(f"v_rcp_f32 v{tmp+j}, v{tmp+j}")
        for h in range(2):
            x = vr(t + 2*h, 2); u = vr(tmp + 2*h, 2); a(f"v_pk_mul_f32 {u}, {u}, {x}")
        for h in range(2):
            a(f"v_cvt_pk_bf16_f32 v{dst+h}, v{tmp+2*h}, v{tmp+2*h+1}")
    k = 0
    for mt in range(4):
        dst = 64 + (k % 8) * 4; k += 1
        gelu4(ACC + (6*4+mt)*4, dst, TMP)
        a(f"buffer_store_dwordx2 {vr(dst,2)}, v15, s[32:35], s50 offen offset:{mt*1024} sc1")
    for pi in range(3):
        for mt in range(4):
            dst = 64 + (k % 8) * 4; k += 1
            gelu4(ACC + (2*pi*4+mt)*4, dst, TMP)
            gelu4(ACC + ((2*pi+1)*4+mt)*4, dst + 2, TMP + 4)
            a(f"buffer_store_dwordx4 {vr(dst,4)}, v14, s[32:35], s{51+pi} offen offset:{mt*1024} sc1")
    pf.st2(0,3)
    A2 = 32; W2 = [96, 128]; HF = 160
    a("s_lshr_b32 s40, s21, 3")
    a("s_and_b32 s41, s21, 7")
    a("v_and_b32 v15, 1, v13"); a("v_lshrrev_b32 v17, 1, v13")
    a("s_lshl_b32 s42, s3, 11")
    a("v_lshlrev_b32 v16, 4, v12"); a("v_lshl_add_u32 v16, v15, 10, v16"); a("v_lshl_add_u32 v16, v17, 8, v16"); a("v_add_u32 v16, s42, v16")
    a("s_mul_i32 s44, s20, 112"); a("s_mul_i32 s45, s40, 56"); a("s_add_u32 s44, s44, s45"); a("s_lshl_b32 s44, s44, 13")
    a(f"s_add_u32 s45, s44, {56*8192}")
    a("v_lshrrev_b32 v3, 2, v12")
    a("v_lshl_add_u32 v4, v17, 2, v3"); a("v_lshlrev_b32 v4, 8, v4")
    a("v_lshl_add_u32 v3, v3, 1, v15"); a("v_lshl_add_u32 v4, v3, 5, v4")
    a("v_and_b32 v3, 3, v2"); a("v_lshl_add_u32 v4, v3, 3, v4")
    a("s_lshl_b32 s43, s40, 7"); a("v_xor_b32 v4, s43, v4")
    for t in range(1, 4): a(f"v_xor_b32 v{4+t}, {t*64}, v4")
    a("v_sub_u32 v19, s41, v2"); a("v_and_b32 v19, 7, v19"); a("v_lshlrev_b32 v19, 2, v19"); a("v_lshl_add_u32 v19, v2, 10, v19")
    a("s_and_b32 s46, s67, 0xf8"); a("s_lshl_b32 s46, s46, 10"); a(f"s_add_u32 s46, s46, {XFL}")
    a("s_waitcnt vmcnt(16)")
    for c in range(8):
        t = A2 + c*4; b = 96 + c*2
        a(f"v_lshlrev_b32 v{t}, 16, v{b}"); a(f"v_and_b32 v{t+1}, 0xffff0000, v{b}")
        a(f"v_lshlrev_b32 v{t+2}, 16, v{b+1}"); a(f"v_and_b32 v{t+3}, 0xffff0000, v{b+1}")
    a("s_waitcnt vmcnt(0)")
    a("s_cmp_lg_u32 s3, 0")
    a("s_barrier")
    a("s_cbranch_scc1 L_NOPUB")
    a("s_mov_b64 exec, 255"); a("buffer_store_dword v18, v19, s[32:35], s46 offen sc1"); a("s_mov_b64 exec, -1")
    a.label("L_NOPUB")
    pf.st2(4,0)
    q = VmQ(a)
    def hload(v, part=3):
        nol = P.noh and v >= 16
        if part & 1:
            if not nol: a(f"buffer_load_dwordx4 {vr(HF + (v % PD)*8, 4)}, v16, s[32:35], s66 offen{P.hsc}")
            q.issue()
        if part & 2:
            if not nol: a(f"buffer_load_dwordx4 {vr(HF + (v % PD)*8 + 4, 4)}, v16, s[32:35], s66 offen offset:512{P.hsc}")
            q.issue(("h", v))
            a("s_add_u32 s66, s66, 8192"); a("s_cmp_eq_u32 s66, s45"); a("s_cselect_b32 s66, s44, s66")
    def order(u):
        if u == U - 1: return [(0, 2), (0, 3), (1, 2), (1, 3), (0, 0), (0, 1), (1, 0), (1, 1)]
        return [(kk, t) for kk in range(2) for t in range(4)]
    def reads2(u):
        out = []
        base = ((u >> 1) & 3) * 16384 + (u & 1) * 8192
        for kk, t in order(u):
            for hf in range(2):
                r = f"ds_read_b64_tr_b16 {vr(W2[u & 1] + (kk*4+t)*4 + hf*2, 2)}, v{4+t} offset:{base + kk*2048 + hf*4096}"
                if u % 8 == 0 and u > 0 and hf == 0 and kk == 0: r = f"v_xor_b32 v{4+t}, 0x10000, v{4+t}\n    " + r
                out.append(r)
        return out
    for v in range(7): hload(v)
    for r in reads2(0): a(r)
    for i in range(32, 64, 2): a(f"v_pk_mov_b32 {vr(A2+i,2)}, 0, 0")
    srd(a, 36, 14, OUT_BYTES)
    def xsend(j):
        a(f"buffer_store_dwordx4 {vr(A2 + 32 + j*4, 4)}, v15, s[32:35], s{46 + j//4} offen offset:{(j%4)*1024} sc1")
    PAT = P.pat.split(",")
    assert len(PAT) == 8 and sum(int(ch) for g in PAT for ch in g if ch.isdigit()) == 16
    def step(u, first=False):
        bar = (u & 1) and u + 1 < U
        if bar and ("B" not in P.pat or u < 8): a("s_barrier"); bar = False
        q.wait(("h", u))
        rd = reads2(u + 1) if u + 1 < U else []
        i = 0
        hv = [v for v in range(7, U) if iss[v] == u - 1]
        spread = len(hv) == 1 and u >= 8
        if hv and not spread:
            for v in hv: hload(v)
        last = None
        for m, (kk, t) in enumerate(order(u)):
            cnt = min(15, 16 - 2*(m+1) + i)
            if last is None or cnt < last: a(f"s_waitcnt lgkmcnt({cnt})"); last = cnt
            acc = vr(A2 + t*16, 16)
            a(f"v_mfma_f32_32x32x16_bf16 {acc}, {vr(W2[u&1]+(kk*4+t)*4, 4)}, {vr(HF + (u % PD)*8 + kk*4, 4)}, {acc}")
            for ch in PAT[m]:
                if ch.isdigit():
                    assert not bar
                    for _ in range(int(ch)):
                        if i < len(rd):
                            if not (P.nord and u >= 8 and (P.nord == 1 or i & 1)): a(rd[i])
                            i += 1; last += 1
                elif ch == "B":
                    if bar: a("s_barrier"); bar = False
                elif ch == "a":
                    if spread: hload(hv[0], 1)
                elif ch == "b":
                    if spread: hload(hv[0], 2)
            if u == U - 1 and m >= 5:
                if m == 5: a("s_nop 5")
                for j in {5: (0, 1, 2), 6: (3, 4, 5), 7: (6, 7)}[m]: xsend(j)
        assert not bar
    for u in range(8): step(u)
    pf.st2(5,0,2)
    a("s_mov_b32 s60, 0")
    a.label("L_LOOP2")
    for u in range(8, 16): step(u)
    if P.prof == 3:
        for k, ix in ((0, 3), (2, 4), (3, 5)):
            a(f"s_cmp_eq_u32 s60, {k}"); a(f"s_cbranch_scc0 L_PSK{k}"); pf.st2(0, 0, ix); a.label(f"L_PSK{k}")
    a("s_add_u32 s60, s60, 1"); a("s_cmp_lt_u32 s60, 5"); a("s_cbranch_scc1 L_LOOP2")
    for v in range(16, 24):
        if ("h", v) in q.tags: q.tags[("h", v + 32)] = q.tags[("h", v)]
    a("v_lshlrev_b32 v15, 4, v2")
    a("s_lshl_b32 s46, s62, 13"); a(f"s_add_u32 s46, s46, {XCH}"); a("s_add_u32 s47, s46, 4096")
    a("s_xor_b32 s48, s46, %d" % (8*4*8192)); a("s_add_u32 s49, s48, 4096")
    a("s_xor_b32 s50, s63, 8192")
    a("v_mov_b32 v3, 0"); a("v_mov_b32 v18, 1")
    for u in range(48, 56): step(u)
    pf.st2(6,4,6)
    a("s_lshl_b32 s42, s20, 7"); a("s_lshl_b32 s43, s3, 5"); a("s_add_u32 s42, s42, s43")
    a("s_lshl_b32 s42, s42, 11"); a("s_add_u32 s42, s42, s54")
    a("v_and_b32 v16, 31, v2"); a("v_lshlrev_b32 v16, 11, v16"); a("v_lshl_add_u32 v16, v17, 4, v16")
    a("s_waitcnt vmcnt(0)")
    pf.st2(0,5)
    a("buffer_store_dword v18, v3, s[32:35], s50 offen sc1")
    a(f"s_mov_b32 s51, {SPIN}")
    a.label("L_XPOLL")
    a("buffer_load_dword v19, v3, s[32:35], s63 offen sc1")
    a("s_sub_u32 s51, s51, 1")
    a("s_waitcnt vmcnt(0)")
    a("v_readfirstlane_b32 s52, v19")
    a("s_cmp_eq_u32 s52, 1"); a("s_cbranch_scc1 L_XDONE")
    a("s_cmp_lg_u32 s51, 0"); a("s_cbranch_scc1 L_XPOLL")
    a.label("L_XDONE")
    pf.st2(0,6)
    for nt in range(8):
        a(f"buffer_load_dwordx4 {vr(HF + nt*4, 4)}, v15, s[32:35], s{48 + nt//4} offen offset:{(nt%4)*1024} sc1")
    for g in range(4):
        t = A2 + g*8; p = HF + g*8
        a(f"s_waitcnt vmcnt({6 - g})")
        for r in (0, 2, 4, 6): a(f"v_pk_add_f32 {vr(t+r,2)}, {vr(t+r,2)}, {vr(p+r,2)}")
        for r in range(4): a(f"v_cvt_pk_bf16_f32 v{p+r}, v{t+2*r}, v{t+2*r+1}")
        a("s_nop 1")
        a(f"v_permlane32_swap_b32 v{p}, v{p+2}"); a(f"v_permlane32_swap_b32 v{p+1}, v{p+3}")
        a(f"buffer_store_dwordx4 {vr(p,4)}, v16, s[36:39], s42 offen offset:{g*32}")
    pf.dump()
    a.label("L_END")
    a("s_endpgm")
    return dict(vgpr=240, lds=3 * REG, block=512)

def main():
    ap = argparse.ArgumentParser()
    ap.add_argument("-o", default="f.s")
    ap.add_argument("--rot1", type=int, default=3)
    ap.add_argument("--t1", default="")
    ap.add_argument("--t2", default="16:0,16:1,16:2,16:3")
    ap.add_argument("--t2split", type=int, default=1)
    ap.add_argument("--l1", type=int, default=3)
    ap.add_argument("--un1", type=int, default=2)
    ap.add_argument("--mark", type=int, default=2)
    ap.add_argument("--nr", type=int, default=0)
    ap.add_argument("--prof", type=int, default=0)
    ap.add_argument("--noh", type=int, default=0)
    ap.add_argument("--pat", default="aB,3,3,2,b,3,3,2")
    ap.add_argument("--nord", type=int, default=0)
    ap.add_argument("--hpos", type=int, default=0)
    ap.add_argument("--hsc", default="sc1")
    P = ap.parse_args()
    if P.hsc: P.hsc = " " + P.hsc
    a = Asm()
    k = gen(a, P)
    hdr = ["; fused MLP: out = gelu(x@w1+b1)@w2+b2 ; h handed between workgroups through d_ws with per-producer flags in d_debug",
           f"; @launch grid=(256,1,1) block=({k['block']},1,1) lds={k['lds']}",
           '.amdgcn_target "amdgcn-amd-amdhsa--gfx950"', ".text", f".globl {KN}"]
    tail = ['.section .rodata,"a"', ".p2align 6", f".amdhsa_kernel {KN}",
            f"  .amdhsa_next_free_vgpr {k['vgpr']}", "  .amdhsa_next_free_sgpr 102",
            f"  .amdhsa_accum_offset {k['vgpr']}", "  .amdhsa_group_segment_fixed_size 0",
            "  .amdhsa_kernarg_size 64", "  .amdhsa_user_sgpr_count 2",
            "  .amdhsa_user_sgpr_kernarg_segment_ptr 1", "  .amdhsa_system_sgpr_workgroup_id_x 1",
            ".end_amdhsa_kernel"]
    open(P.o, "w").write("\n".join(hdr) + "\n" + a.text() + "\n".join(tail) + "\n")

if __name__ == "__main__":
    main()
```

```python
import sys, argparse, struct
from gen import Asm, vr, sr, srd, VmQ, f32, S, D, F, X_BYTES, W1_BYTES, W2_BYTES, H_BYTES, OUT_BYTES

KN = "standalone__dense_activation_gelu__prompt_kernel"
WS_SZ = 64 << 20
XCH = 32 << 20
XFL = 48 << 20
PROF_BASE = 64 << 20

class Prof:
    def __init__(self, a, on):
        self.a = a; self.on = on
    def st2(self, i1, i2, i3=0):
        i = i1 if self.on == 1 else i2 if self.on == 2 else i3
        if self.on and i: self.a(f"s_memtime s[{70+2*i}:{71+2*i}]")
    def stamp(self, i):
        if self.on: self.a(f"s_memtime s[{70+2*i}:{71+2*i}]")
    def rt(self, i):
        if self.on: self.a(f"s_memrealtime s[{70+2*i}:{71+2*i}]")
    def dump(self):
        if not self.on: return
        a = self.a
        a("s_mov_b64 exec, -1")
        a("s_waitcnt vmcnt(0)")
        a("s_memtime s[84:85]"); a("s_memrealtime s[86:87]")
        a("s_waitcnt lgkmcnt(0)")
        a("s_mov_b32 s92, s18"); a("s_and_b32 s93, s19, 0xffff"); a("s_mov_b32 s94, 0x10000000"); a("s_mov_b32 s95, 0x20000")
        a("s_lshl_b32 s90, s2, 4"); a("s_add_u32 s90, s90, s3"); a("s_lshl_b32 s90, s90, 6")
        a(f"s_add_u32 s90, s90, {PROF_BASE}")
        a("v_mov_b32 v1, 0")
        for i in range(9):
            a(f"v_mov_b32 v0, s{70+2*i}")
            a(f"buffer_store_dword v0, v1, s[92:95], s90 offen offset:{4*i}")
        a("s_waitcnt vmcnt(0)")

def gen(a, P):
    REG = 49152
    NST1 = 16
    NST2 = 28; NB2 = 8; PD = 8; U = 56
    SPIN = 40000
    HB = 98304; CNT = 160000; PS = P.ps
    a.raw(".p2align 8"); a.raw(f".type {KN},@function"); a.label(KN)
    a("s_cmp_ge_u32 s2, 256"); a("s_cbranch_scc1 L_END")
    if P.scr: a("s_lshl_b32 s22, s2, 3"); a("s_lshr_b32 s2, s2, 5"); a("s_or_b32 s2, s2, s22"); a("s_and_b32 s2, s2, 255")
    pf = Prof(a, P.prof)
    pf.rt(0); pf.stamp(1)
    a("s_load_dwordx8 s[4:11], s[0:1], 0")
    a("s_load_dwordx8 s[12:19], s[0:1], 32")
    a("v_lshrrev_b32 v1, 6, v0"); a("v_and_b32 v2, 63, v0"); a("v_readfirstlane_b32 s3, v1")
    a("s_and_b32 s22, s2, 7"); a("s_lshr_b32 s23, s2, 3")
    a("s_and_b32 s20, s22, 1"); a("s_lshl_b32 s20, s20, 3"); a("s_and_b32 s21, s23, 7"); a("s_add_u32 s20, s20, s21")
    a("s_lshr_b32 s21, s22, 1"); a("s_lshl_b32 s21, s21, 2"); a("s_lshr_b32 s40, s23, 3"); a("s_add_u32 s21, s21, s40")
    a("s_cmp_lt_u32 s3, 4"); a("s_cbranch_scc1 L_COMP")
    if P.rot1 == 0: a("s_mov_b32 s41, 0")
    elif P.rot1 == 1: a("s_add_u32 s41, s20, s21"); a("s_and_b32 s41, s41, 15")
    else:
        a("s_lshr_b32 s41, s22, 1"); a("s_lshl_b32 s41, s41, 2"); a("s_lshl_b32 s42, s22, 3"); a("s_add_u32 s41, s41, s42")
        if P.rot1 == 3: a("s_add_u32 s42, s20, s21"); a("s_and_b32 s42, s42, 1"); a("s_lshl_b32 s42, s42, 1"); a("s_add_u32 s41, s41, s42")
        a("s_and_b32 s41, s41, 15")
    a("s_and_b32 s40, s3, 1")
    def st_setup():
        a("s_lshr_b32 s68, s22, 2"); a("s_mul_i32 s68, s68, 1792"); a("s_mul_i32 s69, s23, 28"); a("s_add_u32 s68, s68, s69")
        a("s_and_b32 s69, s22, 1"); a("s_mul_i32 s69, s69, 896"); a("s_add_u32 s68, s68, s69")
        a("s_and_b32 s69, s3, 3"); a("s_mul_i32 s69, s69, 7"); a("s_add_u32 s68, s68, s69"); a("s_lshl_b32 s68, s68, 11")
        a("s_bfe_u32 s69, s22, 0x10001"); a("s_lshl_b32 s69, s69, 10"); a("s_add_u32 s68, s68, s69")
        a("s_add_u32 s68, s10, s68"); a("s_addc_u32 s69, s11, 0")
    st_at = [int(x) for x in P.st.split(",")] if P.st else []
    def st_rows(i):
        if st_at and i == min(st_at): st_setup()
        for r, w in enumerate(st_at):
            if w == i:
                for j in range(0, 1024, P.sts): a(f"s_load_dword s96, s[68:69], {r*2048 + j}")
    a("s_cmp_gt_u32 s3, 5"); a("s_cbranch_scc1 L_LOADA")
    a("v_bfe_u32 v4, v2, 2, 2"); a("v_mul_u32_u24 v4, 7168, v4")
    a("v_lshrrev_b32 v3, 4, v2"); a("v_lshl_add_u32 v4, v3, 6, v4")
    a("v_and_b32 v5, 3, v2"); a("v_lshl_add_u32 v4, v5, 4, v4")
    a("s_mul_i32 s44, s21, 448"); a("s_lshl_b32 s45, s40, 8"); a("s_add_u32 s44, s44, s45")
    a("v_add_u32 v8, s44, v4"); a("v_xor_b32 v4, 32, v8")
    for j in range(1, 16): a(f"v_add_u32 v{8+j}, {j*28672}, " + ("v4" if j & 2 else "v8"))
    KS = 64 * 7168
    a(f"s_mul_i32 s41, s41, {KS}")
    a("s_lshl_b32 s42, s40, 10"); a(f"s_add_u32 s42, s42, 16384")
    a("s_lshl_b32 s45, s40, 4"); a("s_lshr_b32 s45, -1, s45"); a("s_mov_b32 exec_hi, s45")
    a("s_waitcnt lgkmcnt(0)")
    srd(a, 24, 6, W1_BYTES)
    q = VmQ(a)
    def sched(txt):
        d = {}
        if txt:
            for it in txt.split(","):
                w, u = it.split(":"); d.setdefault(int(w), []).append(int(u))
        return d
    tsched = sched(P.t1); t2sched = sched(P.t2)
    def touch_setup():
        a("s_cmp_eq_u32 s40, 0")
        a("s_cselect_b32 s32, s4, s6"); a("s_cselect_b32 s33, s5, s7"); a("s_and_b32 s33, s33, 0xffff")
        a(f"s_mov_b32 s34, {X_BYTES}"); a("s_cmp_eq_u32 s40, 1"); a(f"s_cselect_b32 s34, {W1_BYTES}, s34"); a("s_mov_b32 s35, 0x20000")
        a("s_movk_i32 s52, 256"); a(f"s_cselect_b32 s52, {128*7168}, s52")
        a("v_and_b32 v24, 7, v2"); a("v_lshlrev_b32 v24, 11, v24"); a("v_bfe_u32 v25, v2, 3, 1"); a("v_lshl_add_u32 v24, v25, 7, v24")
        a("s_lshl_b32 s50, s2, 14"); a("v_add_u32 v24, s50, v24")
        a("v_min_u32 v25, 27, v2"); a("v_lshlrev_b32 v25, 7, v25")
        a("s_lshr_b32 s50, s2, 1"); a("s_mul_i32 s50, s50, 7168"); a("s_and_b32 s51, s2, 1"); a("s_mul_i32 s51, s51, 3584"); a("s_add_u32 s50, s50, s51")
        a("v_add_u32 v25, s50, v25")
        a("s_cmp_eq_u32 s40, 0"); a("s_cselect_b64 vcc, -1, 0"); a("v_cndmask_b32 v24, v25, v24, vcc")
    def touch(u):
        a(f"s_mul_i32 s50, s52, {u}")
        a(f"buffer_load_dword v26, v24, s[32:35], s50 offen"); q.issue()
    def touch2_setup():
        a("v_bfe_u32 v27, v2, 3, 2"); a("v_and_b32 v25, 7, v2"); a("v_lshlrev_b32 v25, 7, v25"); a("v_lshl_add_u32 v27, v27, 11, v25")
        a("s_lshr_b32 s53, s22, 2"); a(f"s_mul_i32 s53, s53, 1792"); a("s_lshl_b32 s54, s23, 3"); a("s_add_u32 s53, s53, s54")
        a("s_lshl_b32 s54, s40, 2"); a("s_add_u32 s53, s53, s54")
        a("s_and_b32 s54, s22, 1"); a(f"s_mul_i32 s54, s54, 896"); a("s_add_u32 s53, s53, s54"); a("s_lshl_b32 s53, s53, 11")
        a("s_bfe_u32 s54, s22, 0x10001"); a("s_lshl_b32 s54, s54, 10"); a("s_add_u32 s53, s53, s54")
    def touch2(u):
        a(f"s_add_u32 s54, s53, {u*256*2048}")
        a(f"buffer_load_dword v26, v27, s[28:31], s54 offen"); q.issue()
    def issueB(s):
        for j in range(16):
            a(f"s_add_u32 m0, s42, {((s + 2) % 3) * REG + j*2048}")
            if j == 0: a(f"s_add_u32 s46, s41, {KS}")
            elif j == 1: a(f"s_cmp_eq_u32 s46, {16*KS}")
            else: a("s_nop 0")
            a(f"buffer_load_dwordx4 v{8+j}, s[24:27], s41 offen lds")
            q.issue(("a", s) if j == 15 else None)
            if j == 1: a("s_cselect_b32 s46, 0, s46")
        a("s_mov_b32 s41, s46")
    pf.stamp(2)
    for i in range(16):
        if i >= 2: q.wait(("a", i - 2)); a("s_barrier")
        issueB(i)
        if i == 0:
            srd(a, 28, 10, W2_BYTES)
            if tsched: touch_setup()
        if i == 2 and t2sched: touch2_setup()
        st_rows(i)
        for u in tsched.get(i, []): touch(u)
        for u in t2sched.get(i, []): touch2(u)
    pf.stamp(3)
    a("s_mov_b64 exec, -1")
    a("v_lshrrev_b32 v3, 4, v2")
    a("v_bfe_u32 v4, v2, 1, 3"); a("v_lshlrev_b32 v5, 1, v3"); a("v_xor_b32 v4, v4, v5"); a("v_lshlrev_b32 v4, 5, v4")
    a("v_and_b32 v5, 1, v2"); a("v_lshl_add_u32 v4, v5, 4, v4")
    a("v_lshl_add_u32 v4, v3, 11, v4")
    a("s_lshr_b32 s44, s21, 3"); a(f"s_mul_i32 s44, s44, {1792*2048}")
    a("s_and_b32 s45, s21, 7"); a("s_lshl_b32 s46, s45, 8"); a("s_add_u32 s44, s44, s46")
    a("v_add_u32 v30, s44, v4")
    for j in range(1, 8): a(f"v_add_u32 v{30+j}, {j*8192}, v30")
    a("s_mul_i32 s41, s45, 7"); a("s_add_u32 s41, s41, s40"); a("s_lshl_b32 s41, s41, 16")
    a("s_lshl_b32 s42, s40, 13")
    a("v_lshlrev_b32 v38, 4, v2"); a("v_add_u32 v38, s42, v38"); a("v_add_u32 v39, 0x10000, v38")
    NR = P.nr
    def issueW(s, loop=False):
        reg = (not loop) and 8 <= s < 8 + NR
        for j in range(8):
            if not reg: a(f"s_add_u32 m0, s42, {(0 if loop else (s % NB2) * 16384) + j*1024}")
            if j == 0: a(f"s_add_u32 s46, s41, {2*65536}")
            elif j == 1: a(f"s_sub_u32 s48, s46, {56*65536}")
            elif j == 2: a(f"s_cmp_ge_u32 s46, {56*65536}")
            elif not reg: a("s_nop 0")
            if not loop and q.n - q.done >= 63:
                a("s_waitcnt vmcnt(55)"); q.done = q.n - 55
            if reg: a(f"buffer_load_dwordx4 {vr(40 + (s-8)*32 + j*4, 4)}, v{30+j}, s[28:31], s41 offen")
            else: a(f"buffer_load_dwordx4 v{30+j}, s[28:31], s41 offen lds")
            if j == 2: a("s_cselect_b32 s46, s48, s46")
            if not loop: q.issue(("w", s) if j == 7 else None)
        a("s_mov_b32 s41, s46")
    q.wait(("a", 14)); a("s_barrier")
    for s in (0, 1, 2): issueW(s)
    q.wait(("a", 15)); a("s_barrier")
    for u in t2sched.get(16, []): touch2(u)
    for s in (3, 4, 5): issueW(s)
    a("s_barrier")
    for u in t2sched.get(17, []): touch2(u)
    assert NR == 0
    q.wait(("w", 0))
    pf.stamp(4)
    a("s_barrier")
    pf.stamp(5)
    q.wait(("w", 1)); a("s_barrier")
    for s in (6, 7): issueW(s)
    for s in range(1, NR + 1):
        q.wait(("w", s + 1)); a("s_barrier")
        q.wait(("w", s + 7))
        for j in range(8):
            a(f"ds_write_b128 v{38 + ((s-1) >> 2)}, {vr(40 + (s-1)*32 + j*4, 4)} offset:{((s-1) & 3)*16384 + j*1024}")
    a(f"s_add_u32 s42, s42, {NR*16384}")
    a(f"s_mov_b32 s47, {NR + 1}")
    a("s_waitcnt lgkmcnt(0)")
    a.label("L_WLOOP")
    a("s_waitcnt vmcnt(40)"); a("s_barrier")
    issueW(0, True)
    a("s_add_u32 s42, s42, 16384"); a("s_and_b32 s42, s42, 0x1ffff")
    a("s_add_u32 s47, s47, 1"); a("s_cmp_lt_u32 s47, 21"); a("s_cbranch_scc1 L_WLOOP")
    for s in range(21, 27):
        a(f"s_waitcnt vmcnt({(26 - s) * 8})"); a("s_barrier")
    pf.dump(); a("s_endpgm")
    a.label("L_LOADA")
    a("v_lshrrev_b32 v3, 3, v2")
    a("v_and_b32 v4, 7, v2"); a("v_xor_b32 v4, v4, v3"); a("v_lshlrev_b32 v4, 4, v4")
    a("v_lshl_add_u32 v4, v3, 11, v4")
    a("s_lshl_b32 s44, s20, 18"); a("s_lshl_b32 s45, s40, 17"); a("s_add_u32 s44, s44, s45")
    a("v_add_u32 v8, s44, v4")
    for j in range(1, 8): a(f"v_add_u32 v{8+j}, {j*16384}, v8")
    a("s_lshl_b32 s41, s41, 7")
    a("s_lshl_b32 s42, s40, 13")
    a("s_waitcnt lgkmcnt(0)")
    srd(a, 24, 4, X_BYTES)
    q = VmQ(a)
    srd(a, 36, 16, 256)
    srd(a, 56, 18, WS_SZ)
    a("s_lshl_b32 s60, s20, 4"); a("s_add_u32 s61, s60, s21")
    a("s_lshl_b32 s62, s61, 10"); a(f"s_add_u32 s62, s62, {XFL}")
    a("v_lshlrev_b32 v40, 3, v2"); a("s_lshl_b32 s63, s40, 9"); a("s_add_u32 s63, s63, s62")
    a("v_mov_b32 v42, 0"); a("v_mov_b32 v43, 0"); a("v_mov_b32 v44, 1")
    a("buffer_store_dwordx2 v[42:43], v40, s[56:59], s63 offen sc1"); q.issue()
    a(f"v_mov_b32 v41, {CNT}"); a("ds_write_b32 v41, v42"); a("s_waitcnt lgkmcnt(0)")
    if P.warmh:
        a("s_mul_i32 s64, s20, 112"); a("s_mul_i32 s65, s21, 7"); a("s_add_u32 s64, s64, s65"); a("s_lshl_b32 s64, s64, 13")
        a("s_lshl_b32 s65, s40, 11"); a("s_add_u32 s64, s64, s65")
        a("v_lshlrev_b32 v45, 4, v2")
        for i in range(4): a(f"v_mov_b32 v{48+i}, -1")
        a("s_lshl_b32 s66, s61, 15"); a(f"s_add_u32 s66, s66, {XCH}"); a("s_add_u32 s66, s66, s65")
    def issueA(s):
        if P.warmh & 1 and s >= 2:
            for j in range(2):
                a(f"buffer_store_dwordx4 v[48:51], v45, s[56:59], s64 offen offset:{j*1024}{P.wsc}"); q.issue()
            a("s_add_u32 s64, s64, 4096")
        if P.warmh & 2 and 2 <= s < 10:
            for j in range(2):
                a(f"buffer_store_dwordx4 v[48:51], v45, s[56:59], s66 offen offset:{j*1024}{P.wsc}"); q.issue()
            a("s_add_u32 s66, s66, 4096")
        for j in range(8):
            a(f"s_add_u32 m0, s42, {((s + 2) % 3) * REG + j*1024}")
            if j == 0: a("s_add_u32 s46, s41, 128")
            elif j == 1: a("s_and_b32 s46, s46, 2047")
            else: a("s_nop 0")
            a(f"buffer_load_dwordx4 v{8+j}, s[24:27], s41 offen lds")
            q.issue(("a", s) if j == 7 else None)
        a("s_mov_b32 s41, s46")
    pf.stamp(2)
    issueA(0); issueA(1)
    pf.stamp(3)
    for i in range(17):
        if i < 16: q.wait(("a", i))
        a("s_barrier")
        if i + 2 < 16 and i != 0 or i == 0: pass
        nxt = i + 2
        if nxt < 16: issueA(nxt); st_rows(nxt)
    pf.stamp(4)
    a("s_cmp_eq_u32 s40, 1"); a("s_cbranch_scc1 L_AEND")
    a(f"s_mov_b32 s51, {SPIN if P.mark else 1}"); a("s_mov_b32 s52, " + ("16" if P.mark == 2 else "0x01010101"))
    a("v_lshlrev_b32 v3, 2, v2")
    a("s_mov_b64 exec, " + ("1" if P.mark == 2 else "15"))
    a.label("L_MARK")
    a("buffer_load_dword v6, v3, s[36:39], s60 offen sc1")
    a("s_sub_u32 s51, s51, 1")
    a("s_waitcnt vmcnt(0)")
    a(("v_cmp_gt_u32" if P.mark == 2 else "v_cmp_ne_u32") + " vcc, s52, v6")
    a("s_cbranch_vccz L_MARKD")
    a("s_cmp_lg_u32 s51, 0"); a("s_cbranch_scc1 L_MARK")
    a.label("L_MARKD")
    a("s_mov_b64 exec, 255")
    a("s_and_b32 s47, s21, 7"); a("v_sub_u32 v5, s47, v2"); a("v_and_b32 v5, 7, v5"); a("v_lshlrev_b32 v5, 2, v5"); a("v_lshl_add_u32 v5, v2, 10, v5")
    a("s_and_b32 s46, s61, 0xf8"); a("s_lshl_b32 s46, s46, 10"); a(f"s_add_u32 s46, s46, {XFL}")
    a("s_mov_b32 s48, 0")
    a("s_barrier")
    pf.stamp(5)
    np_ = [0]
    def poll(j):
        n = np_[0]; np_[0] += 1
        a(f"s_mov_b32 s51, {SPIN}")
        a.label(f"L_POLL{n}")
        a(f"s_bitcmp1_b32 s48, {j}"); a(f"s_cbranch_scc1 L_POLLD{n}")
        a("buffer_load_dword v6, v3, s[56:59], s62 offen sc1")
        a("s_sub_u32 s51, s51, 1")
        a("s_waitcnt vmcnt(0)")
        a("v_cmp_eq_u32 vcc, 1, v6")
        a("s_mov_b32 s48, vcc_lo")
        a("s_cmp_lg_u32 s51, 0"); a(f"s_cbranch_scc1 L_POLL{n}")
        a.label(f"L_POLLD{n}")
    iss = {}
    for v in range(7, U): iss[v] = max(v - PD, PS - 1)
    have = 0
    for s in range(27):
        lim = 2*s + 1 if 2*s + 3 < 8 else 2*s + 2
        need = max([v // 7 for v in iss if iss[v] <= lim] + [0])
        if 2*s + 1 < PS: assert need == 0
        while have < need:
            have += 1; poll(have)
            if have == 1: pf.stamp(6)
        if have == 7 and not P.prof: break
        a("s_barrier")
    a.label("L_AEND")
    a("s_waitcnt vmcnt(0) lgkmcnt(0)")
    pf.dump(); a("s_endpgm")
    a.label("L_COMP")
    ACC = 128; XF = [32, 76]; WF = [48, 92]
    if P.pfi:
        a("s_getpc_b64 s[56:57]")
        a.label("L_PC")
        a(f"s_sub_u32 s56, s56, L_PC-{KN}"); a("s_subb_u32 s57, s57, 0")
        a("s_lshl_b32 s58, s23, 10"); a("s_lshl_b32 s59, s3, 8"); a("s_add_u32 s58, s58, s59")
        for c in range(P.pfi):
            a(f"s_min_u32 s59, s58, L_END-{KN}-192")
            a("s_add_u32 s68, s56, s59"); a("s_addc_u32 s69, s57, 0")
            for j in range(4): a(f"s_load_dword s96, s[68:69], {j*64}")
            a("s_add_u32 s58, s58, 32768")
    a("s_and_b32 s40, s3, 1"); a("s_lshr_b32 s41, s3, 1")
    a("v_and_b32 v12, 15, v2"); a("v_lshrrev_b32 v13, 4, v2")
    a("s_mul_i32 s42, s21, 448"); a("s_lshl_b32 s43, s41, 5"); a("s_add_u32 s43, s43, s42")
    a("s_lshl_b32 s44, s41, 6"); a("s_add_u32 s42, s42, s44")
    a("v_lshlrev_b32 v14, 3, v13")
    a("s_lshl_b32 s62, s20, 4"); a("s_add_u32 s62, s62, s21"); a("s_lshl_b32 s62, s62, 2"); a("s_add_u32 s62, s62, s3")
    a("s_lshr_b32 s63, s62, 2"); a("s_lshl_b32 s63, s63, 3"); a("s_add_u32 s63, s63, s3"); a("s_lshl_b32 s63, s63, 7"); a(f"s_add_u32 s63, s63, {XFL + 128}")
    a("s_waitcnt lgkmcnt(0)")
    srd(a, 28, 8, F * 2)
    for nt in range(7):
        a(f"buffer_load_dwordx2 {vr(XF[1] + nt*2, 2)}, v14, s[28:31], {'s42' if nt < 6 else 's43'} offen offset:{64 + (nt>>1)*128 + (nt&1)*32 if nt < 6 else 0}")
    srd(a, 32, 18, WS_SZ)
    a("v_and_b32 v15, 7, v12"); a("v_xor_b32 v15, v15, v13"); a("v_lshlrev_b32 v15, 4, v15"); a("v_lshl_add_u32 v15, v12, 7, v15")
    a("s_lshl_b32 s43, s40, 13"); a(f"s_add_u32 s43, s43, {2*REG}")
    a("v_add_u32 v4, s43, v15"); a("v_xor_b32 v5, 64, v4")
    a("v_lshlrev_b32 v15, 12, v13")
    a("v_bfe_u32 v16, v2, 2, 2"); a("v_lshl_add_u32 v15, v16, 6, v15")
    a("v_and_b32 v16, 3, v2"); a("v_lshl_add_u32 v15, v16, 3, v15")
    a("v_and_b32 v16, 1, v13"); a("v_lshl_add_u32 v15, v16, 5, v15")
    a("s_lshl_b32 s44, s41, 8"); a(f"s_add_u32 s44, s44, {2*REG + 16384}")
    a("v_add_u32 v6, s44, v15"); a("v_xor_b32 v7, 32, v6")
    a("s_lshl_b32 s44, s41, 5"); a("v_xor_b32 v15, s44, v15"); a(f"v_add_u32 v8, {2*REG + 16384}, v15")
    a(f"s_mov_b32 s61, {2*REG}"); a("s_mov_b32 s60, 0")
    a("s_waitcnt vmcnt(0)")
    for nt in range(7):
        b = XF[1] + nt*2; t = ACC + nt*16
        a(f"v_lshlrev_b32 v{t}, 16, v{b}"); a(f"v_and_b32 v{t+1}, 0xffff0000, v{b}")
        a(f"v_lshlrev_b32 v{t+2}, 16, v{b+1}"); a(f"v_and_b32 v{t+3}, 0xffff0000, v{b+1}")
        for mt in range(1, 4):
            for r in (0, 2): a(f"v_pk_mov_b32 {vr(t+mt*4+r,2)}, {vr(t+r,2)}, {vr(t+r,2)} op_sel:[0,1]")
    def reads1(ks):
        out = []
        for mt in range(4):
            out.append(f"ds_read_b128 {vr(XF[ks] + mt*4, 4)}, v{4+ks} offset:{mt*2048}")
        for nt in range(7):
            for hf in range(2):
                out.append(f"ds_read_b64_tr_b16 {vr(WF[ks] + nt*4 + hf*2, 2)}, v{8 if nt == 6 else 6 + (nt&1)} offset:{(8*ks+hf)*2048 + (256 + (nt>>1)*512 if nt < 6 else 0)}")
        return out
    srd(a, 36, 16, 256)
    a("v_mov_b32 v18, 1"); a("v_mov_b32 v19, 0"); a("s_lshr_b32 s67, s62, 2")
    a("s_barrier")
    pf.st2(2,0)
    for r in reads1(0): a(r)
    a("s_cmp_lg_u32 s3, 0"); a("s_cbranch_scc1 L_LOOP1")
    if P.mark == 1: a("s_mov_b64 exec, 1"); a("buffer_store_byte v18, v19, s[36:39], s67 offen sc1"); a("s_mov_b64 exec, -1")
    if P.mark == 2: a("s_mov_b64 exec, 1"); a("s_lshl_b32 s68, s20, 4"); a("buffer_atomic_add v18, v19, s[36:39], s68 offen sc1"); a("s_mov_b64 exec, -1")
    a.label("L_LOOP1")
    for fs in [0, 1] * P.un1:
        a("s_waitcnt lgkmcnt(0)")
        if fs == 1: a("s_barrier")
        rd = reads1(1 - fs)
        if fs == 0:
            rd += [f"s_add_u32 s64, s61, {REG}", f"s_cmp_eq_u32 s64, {3*REG}", "s_cselect_b32 s64, 0, s64", "s_sub_u32 s65, s64, s61", "s_mov_b32 s61, s64",
                   "v_add_u32 v4, s65, v4", "v_add_u32 v6, s65, v6", "v_add_u32 v7, s65, v7", "v_add_u32 v8, s65, v8", "v_add_u32 v5, s65, v5"]
        else:
            rd += ["s_add_u32 s60, s60, 1", "s_cmp_lt_u32 s60, 16"]
        i = 0
        for nt in range(7):
            for mt in range(4):
                acc = vr(ACC + (nt*4+mt)*4, 4)
                a(f"v_mfma_f32_16x16x32_bf16 {acc}, {vr(WF[fs]+nt*4, 4)}, {vr(XF[fs]+mt*4, 4)}, {acc}")
                if i < len(rd): a(rd[i]); i += 1
        assert i == len(rd)
    a("s_cbranch_scc1 L_LOOP1")
    pf.st2(3,2)
    c0 = -2.0 * 0.7978845608028654 * 1.4426950408889634
    c1 = c0 * 0.044715
    a(f"s_mov_b32 s46, {f32(c1)}"); a(f"s_mov_b32 s47, {f32(c0)}")
    a("s_mul_i32 s48, s20, 112"); a("s_mul_i32 s49, s21, 7"); a("s_add_u32 s48, s48, s49")
    a("s_lshl_b32 s66, s48, 13")
    a("s_lshl_b32 s49, s40, 12"); a("s_add_u32 s48, s66, s49")
    a("v_lshlrev_b32 v14, 4, v2")
    a("s_lshl_b32 s49, s41, 3"); a("v_add_u32 v15, s49, v14")
    a("s_mov_b32 s50, s48")
    a("s_lshl_b32 s49, s41, 13"); a("s_add_u32 s51, s48, s49"); a("s_add_u32 s51, s51, 8192")
    a("s_add_u32 s52, s51, 16384"); a("s_add_u32 s53, s51, 32768")
    srd(a, 28, 12, D * 2)
    a("s_lshr_b32 s54, s21, 3"); a("s_lshl_b32 s54, s54, 7"); a("s_and_b32 s55, s21, 7"); a("s_lshl_b32 s55, s55, 8"); a("s_add_u32 s54, s54, s55")
    a("v_lshrrev_b32 v16, 5, v2"); a("v_lshlrev_b32 v16, 3, v16")
    a("s_waitcnt lgkmcnt(0)")
    for c in range(8):
        a(f"buffer_load_dwordx2 {vr(96 + c*2, 2)}, v16, s[28:31], s54 offen offset:{c*16}")
    a("s_lshl_b32 s49, s40, 12"); a(f"s_add_u32 s49, s49, {HB}"); a("v_add_u32 v21, s49, v15")
    a("s_lshl_b32 s55, s41, 13"); a("s_add_u32 s49, s49, s55"); a("v_add_u32 v20, s49, v14")
    TMP = 32
    def gelu4(t, dst, tmp):
        for h in range(2):
            x = vr(t + 2*h, 2); u = vr(tmp + 2*h, 2); a(f"v_pk_mul_f32 {u}, {x}, {x}")
        for h in range(2):
            u = vr(tmp + 2*h, 2); a(f"v_pk_fma_f32 {u}, {u}, s[46:47], s[46:47] op_sel:[0,0,1] op_sel_hi:[1,0,1]")
        for h in range(2):
            x = vr(t + 2*h, 2); u = vr(tmp + 2*h, 2); a(f"v_pk_mul_f32 {u}, {u}, {x}")
        for j in range(4): a(f"v_exp_f32 v{tmp+j}, v{tmp+j}")
        for h in range(2):
            u = vr(tmp + 2*h, 2); a(f"v_pk_add_f32 {u}, {u}, 1.0 op_sel_hi:[1,0]")
        for j in range(4): a(f"v_rcp_f32 v{tmp+j}, v{tmp+j}")
        for h in range(2):
            x = vr(t + 2*h, 2); u = vr(tmp + 2*h, 2); a(f"v_pk_mul_f32 {u}, {u}, {x}")
        for h in range(2):
            a(f"v_cvt_pk_bf16_f32 v{dst+h}, v{tmp+2*h}, v{tmp+2*h+1}")
    k = 0
    for mt in range(4):
        dst = 64 + (k % 8) * 4; k += 1
        gelu4(ACC + (6*4+mt)*4, dst, TMP)
        a(f"buffer_store_dwordx2 {vr(dst,2)}, v15, s[32:35], s50 offen offset:{mt*1024} sc1")
        a(f"ds_write_b64 v21, {vr(dst,2)} offset:{mt*1024}")
    for pi in range(3):
        for mt in range(4):
            dst = 64 + (k % 8) * 4; k += 1
            gelu4(ACC + (2*pi*4+mt)*4, dst, TMP)
            gelu4(ACC + ((2*pi+1)*4+mt)*4, dst + 2, TMP + 4)
            a(f"buffer_store_dwordx4 {vr(dst,4)}, v14, s[32:35], s{51+pi} offen offset:{mt*1024} sc1")
            a(f"ds_write_b128 v20, {vr(dst,4)} offset:{8192 + pi*16384 + mt*1024}")
    pf.st2(0,3)
    A2 = 32; W2 = [96, 128]; HF = 160
    a("s_lshr_b32 s40, s21, 3")
    a("s_and_b32 s41, s21, 7")
    a("v_and_b32 v15, 1, v13"); a("v_lshrrev_b32 v17, 1, v13")
    a("s_lshl_b32 s42, s3, 11")
    a("v_lshlrev_b32 v16, 4, v12"); a("v_lshl_add_u32 v16, v15, 10, v16"); a("v_lshl_add_u32 v16, v17, 8, v16"); a("v_add_u32 v16, s42, v16")
    a("s_mul_i32 s44, s20, 112"); a("s_mul_i32 s45, s40, 56"); a("s_add_u32 s44, s44, s45"); a("s_lshl_b32 s44, s44, 13")
    a(f"s_add_u32 s45, s44, {56*8192}")
    a("v_lshrrev_b32 v3, 2, v12")
    a("v_lshl_add_u32 v4, v17, 2, v3"); a("v_lshlrev_b32 v4, 8, v4")
    a("v_lshl_add_u32 v3, v3, 1, v15"); a("v_lshl_add_u32 v4, v3, 5, v4")
    a("v_and_b32 v3, 3, v2"); a("v_lshl_add_u32 v4, v3, 3, v4")
    a("s_lshl_b32 s43, s40, 7"); a("v_xor_b32 v4, s43, v4")
    for t in range(1, 4): a(f"v_xor_b32 v{4+t}, {t*64}, v4")
    a("v_sub_u32 v19, s41, v2"); a("v_and_b32 v19, 7, v19"); a("v_lshlrev_b32 v19, 2, v19"); a("v_lshl_add_u32 v19, v2, 10, v19")
    a("s_and_b32 s46, s67, 0xf8"); a("s_lshl_b32 s46, s46, 10"); a(f"s_add_u32 s46, s46, {XFL}")
    a("s_waitcnt vmcnt(16)")
    for c in range(8):
        t = A2 + c*4; b = 96 + c*2
        a(f"v_lshlrev_b32 v{t}, 16, v{b}"); a(f"v_and_b32 v{t+1}, 0xffff0000, v{b}")
        a(f"v_lshlrev_b32 v{t+2}, 16, v{b+1}"); a(f"v_and_b32 v{t+3}, 0xffff0000, v{b+1}")
    a(f"v_add_u32 v22, {HB}, v16"); a(f"v_mov_b32 v23, {CNT}")
    a("s_add_u32 s66, s66, %d" % (7*8192)); a("s_cmp_eq_u32 s66, s45"); a("s_cselect_b32 s66, s44, s66")
    a("s_waitcnt lgkmcnt(0)")
    a("s_barrier")
    pf.st2(4,0)
    q = VmQ(a)
    def publish():
        a("s_waitcnt vmcnt(0)")
        a("s_mov_b64 exec, 1"); a("ds_add_rtn_u32 v24, v23, v18"); a("s_mov_b64 exec, 255")
        a("s_waitcnt lgkmcnt(0)")
        a("v_readfirstlane_b32 s47, v24")
        a("s_cmp_lg_u32 s47, 3"); a("s_cbranch_scc1 L_NOPUB")
        a("buffer_store_dword v18, v19, s[32:35], s46 offen sc1")
        a.label("L_NOPUB")
        a("s_mov_b64 exec, -1")
    def hload(v, part=3):
        nol = P.noh and v >= 16
        if part & 1:
            if not nol: a(f"buffer_load_dwordx4 {vr(HF + (v % PD)*8, 4)}, v16, s[32:35], s66 offen{P.hsc}")
            q.issue()
        if part & 2:
            if not nol: a(f"buffer_load_dwordx4 {vr(HF + (v % PD)*8 + 4, 4)}, v16, s[32:35], s66 offen offset:512{P.hsc}")
            q.issue(("h", v))
            a("s_add_u32 s66, s66, 8192"); a("s_cmp_eq_u32 s66, s45"); a("s_cselect_b32 s66, s44, s66")
    def order(u):
        if u == U - 1: return [(0, 2), (0, 3), (1, 2), (1, 3), (0, 0), (0, 1), (1, 0), (1, 1)]
        return [(kk, t) for kk in range(2) for t in range(4)]
    def reads2(u):
        out = []
        base = ((u >> 1) & 3) * 16384 + (u & 1) * 8192
        for kk, t in order(u):
            for hf in range(2):
                r = f"ds_read_b64_tr_b16 {vr(W2[u & 1] + (kk*4+t)*4 + hf*2, 2)}, v{4+t} offset:{base + kk*2048 + hf*4096}"
                if u % 8 == 0 and u > 0 and hf == 0 and kk == 0: r = f"v_xor_b32 v{4+t}, 0x10000, v{4+t}\n    " + r
                out.append(r)
        return out
    for v in range(7):
        for kk in range(2): a(f"ds_read_b128 {vr(HF + v*8 + kk*4, 4)}, v22 offset:{v*8192 + kk*512}")
    for r in reads2(0): a(r)
    for i in range(32, 64, 2): a(f"v_pk_mov_b32 {vr(A2+i,2)}, 0, 0")
    srd(a, 36, 14, OUT_BYTES)
    def xsend(j):
        a(f"buffer_store_dwordx4 {vr(A2 + 32 + j*4, 4)}, v15, s[32:35], s{46 + j//4} offen offset:{(j%4)*1024} sc1")
    PAT = P.pat.split(",")
    assert len(PAT) == 8 and sum(int(ch) for g in PAT for ch in g if ch.isdigit()) == 16
    def step(u, first=False):
        bar = (u & 1) and u + 1 < U
        if u == PS: publish()
        if bar and ("B" not in P.pat or u < 8): a("s_barrier"); bar = False
        rd = reads2(u + 1) if u + 1 < U else []
        i = 0
        hv = [v for v in range(7, U) if iss[v] == u - 1]
        spread = len(hv) == 1 and u >= 8
        if hv and not spread:
            for v in hv: hload(v)
        if u >= 7: q.wait(("h", u))
        last = None
        for m, (kk, t) in enumerate(order(u)):
            cnt = min(15, 16 - 2*(m+1) + i)
            if last is None or cnt < last: a(f"s_waitcnt lgkmcnt({cnt})"); last = cnt
            acc = vr(A2 + t*16, 16)
            a(f"v_mfma_f32_32x32x16_bf16 {acc}, {vr(W2[u&1]+(kk*4+t)*4, 4)}, {vr(HF + (u % PD)*8 + kk*4, 4)}, {acc}")
            for ch in PAT[m]:
                if ch.isdigit():
                    assert not bar
                    for _ in range(int(ch)):
                        if i < len(rd):
                            if not (P.nord and u >= 8 and (P.nord == 1 or i & 1)): a(rd[i])
                            i += 1; last += 1
                elif ch == "B":
                    if bar: a("s_barrier"); bar = False
                elif ch == "a":
                    if spread: hload(hv[0], 1)
                elif ch == "b":
                    if spread: hload(hv[0], 2)
            if u == U - 1 and m >= 5:
                if m == 5: a("s_nop 5")
                for j in {5: (0, 1, 2), 6: (3, 4, 5), 7: (6, 7)}[m]: xsend(j)
        assert not bar
    for u in range(8): step(u)
    pf.st2(5,0,2)
    a("s_mov_b32 s60, 0")
    a.label("L_LOOP2")
    for u in range(8, 16): step(u)
    if P.prof == 3:
        for k, ix in ((0, 3), (2, 4), (3, 5)):
            a(f"s_cmp_eq_u32 s60, {k}"); a(f"s_cbranch_scc0 L_PSK{k}"); pf.st2(0, 0, ix); a.label(f"L_PSK{k}")
    a("s_add_u32 s60, s60, 1"); a("s_cmp_lt_u32 s60, 5"); a("s_cbranch_scc1 L_LOOP2")
    for v in range(16, 24):
        if ("h", v) in q.tags: q.tags[("h", v + 32)] = q.tags[("h", v)]
    a("v_lshlrev_b32 v15, 4, v2")
    a("s_lshl_b32 s46, s62, 13"); a(f"s_add_u32 s46, s46, {XCH}"); a("s_add_u32 s47, s46, 4096")
    a("s_xor_b32 s48, s46, %d" % (8*4*8192)); a("s_add_u32 s49, s48, 4096")
    a("s_xor_b32 s50, s63, 8192")
    a("v_mov_b32 v3, 0"); a("v_mov_b32 v18, 1")
    for u in range(48, 56): step(u)
    pf.st2(6,4,6)
    a("s_lshl_b32 s42, s20, 7"); a("s_lshl_b32 s43, s3, 5"); a("s_add_u32 s42, s42, s43")
    a("s_lshl_b32 s42, s42, 11"); a("s_add_u32 s42, s42, s54")
    a("v_and_b32 v16, 31, v2"); a("v_lshlrev_b32 v16, 11, v16"); a("v_lshl_add_u32 v16, v17, 4, v16")
    a("s_waitcnt vmcnt(0)")
    pf.st2(0,5)
    a("buffer_store_dword v18, v3, s[32:35], s50 offen sc1")
    a(f"s_mov_b32 s51, {SPIN}")
    a.label("L_XPOLL")
    a("buffer_load_dword v19, v3, s[32:35], s63 offen sc1")
    a("s_sub_u32 s51, s51, 1")
    a("s_waitcnt vmcnt(0)")
    a("v_readfirstlane_b32 s52, v19")
    a("s_cmp_eq_u32 s52, 1"); a("s_cbranch_scc1 L_XDONE")
    a("s_cmp_lg_u32 s51, 0"); a("s_cbranch_scc1 L_XPOLL")
    a.label("L_XDONE")
    pf.st2(0,6)
    for nt in range(8):
        a(f"buffer_load_dwordx4 {vr(HF + nt*4, 4)}, v15, s[32:35], s{48 + nt//4} offen offset:{(nt%4)*1024} sc1")
    for g in range(4):
        t = A2 + g*8; p = HF + g*8
        a(f"s_waitcnt vmcnt({6 - g})")
        for r in (0, 2, 4, 6): a(f"v_pk_add_f32 {vr(t+r,2)}, {vr(t+r,2)}, {vr(p+r,2)}")
        for r in range(4): a(f"v_cvt_pk_bf16_f32 v{p+r}, v{t+2*r}, v{t+2*r+1}")
        a("s_nop 1")
        a(f"v_permlane32_swap_b32 v{p}, v{p+2}"); a(f"v_permlane32_swap_b32 v{p+1}, v{p+3}")
        a(f"buffer_store_dwordx4 {vr(p,4)}, v16, s[36:39], s42 offen offset:{g*32}")
    pf.dump()
    a.label("L_END")
    a("s_endpgm")
    return dict(vgpr=240, lds=163840, block=512)

def main():
    ap = argparse.ArgumentParser()
    ap.add_argument("-o", default="f.s")
    ap.add_argument("--rot1", type=int, default=3)
    ap.add_argument("--t1", default="")
    ap.add_argument("--t2", default="14:0,14:1,15:2,15:3")
    ap.add_argument("--t2split", type=int, default=1)
    ap.add_argument("--l1", type=int, default=3)
    ap.add_argument("--un1", type=int, default=2)
    ap.add_argument("--mark", type=int, default=2)
    ap.add_argument("--nr", type=int, default=0)
    ap.add_argument("--prof", type=int, default=0)
    ap.add_argument("--noh", type=int, default=0)
    ap.add_argument("--st", default="")
    ap.add_argument("--sts", type=int, default=128)
    ap.add_argument("--pfi", type=int, default=1)
    ap.add_argument("--warmh", type=int, default=0)
    ap.add_argument("--wsc", default=" sc1")
    ap.add_argument("--ps", type=int, default=3)
    ap.add_argument("--scr", type=int, default=0)
    ap.add_argument("--pat", default="aB,3,3,2,b,3,3,2")
    ap.add_argument("--nord", type=int, default=0)
    ap.add_argument("--hpos", type=int, default=0)
    ap.add_argument("--hsc", default="sc1")
    P = ap.parse_args()
    if P.hsc: P.hsc = " " + P.hsc
    a = Asm()
    k = gen(a, P)
    hdr = ["; fused MLP: out = gelu(x@w1+b1)@w2+b2 ; h handed between workgroups through d_ws with per-producer flags in d_debug",
           f"; @launch grid=(256,1,1) block=({k['block']},1,1) lds={k['lds']}",
           '.amdgcn_target "amdgcn-amd-amdhsa--gfx950"', ".text", f".globl {KN}"]
    tail = ['.section .rodata,"a"', ".p2align 6", f".amdhsa_kernel {KN}",
            f"  .amdhsa_next_free_vgpr {k['vgpr']}", "  .amdhsa_next_free_sgpr 102",
            f"  .amdhsa_accum_offset {k['vgpr']}", "  .amdhsa_group_segment_fixed_size 0",
            "  .amdhsa_kernarg_size 64", "  .amdhsa_user_sgpr_count 2",
            "  .amdhsa_user_sgpr_kernarg_segment_ptr 1", "  .amdhsa_system_sgpr_workgroup_id_x 1",
            ".end_amdhsa_kernel"]
    open(P.o, "w").write("\n".join(hdr) + "\n" + a.text() + "\n".join(tail) + "\n")

if __name__ == "__main__":
    main()
```

```python
import sys, argparse, struct
from gen import Asm, vr, sr, srd, VmQ, f32, S, D, F, X_BYTES, W1_BYTES, W2_BYTES, H_BYTES, OUT_BYTES

KN = "standalone__dense_activation_gelu__prompt_kernel"
WS_SZ = 64 << 20
XCH = 32 << 20
XFL = 48 << 20
PROF_BASE = 64 << 20

class Prof:
    def __init__(self, a, on):
        self.a = a; self.on = on
    def st2(self, i1, i2, i3=0):
        i = i1 if self.on == 1 else i2 if self.on == 2 else i3
        if self.on and i: self.a(f"s_memtime s[{70+2*i}:{71+2*i}]")
    def stamp(self, i):
        if self.on: self.a(f"s_memtime s[{70+2*i}:{71+2*i}]")
    def rt(self, i):
        if self.on: self.a(f"s_memrealtime s[{70+2*i}:{71+2*i}]")
    def dump(self):
        if not self.on: return
        a = self.a
        a("s_mov_b64 exec, -1")
        a("s_waitcnt vmcnt(0)")
        a("s_memtime s[84:85]"); a("s_memrealtime s[86:87]")
        a("s_waitcnt lgkmcnt(0)")
        a("s_mov_b32 s92, s18"); a("s_and_b32 s93, s19, 0xffff"); a("s_mov_b32 s94, 0x10000000"); a("s_mov_b32 s95, 0x20000")
        a("s_lshl_b32 s90, s2, 4"); a("s_add_u32 s90, s90, s3"); a("s_lshl_b32 s90, s90, 6")
        a(f"s_add_u32 s90, s90, {PROF_BASE}")
        a("v_mov_b32 v1, 0")
        for i in range(9):
            a(f"v_mov_b32 v0, s{70+2*i}")
            a(f"buffer_store_dword v0, v1, s[92:95], s90 offen offset:{4*i}")
        a("s_waitcnt vmcnt(0)")

def gen(a, P):
    REG = 49152
    NST1 = 16
    NST2 = 28; NB2 = 8; PD = 8; U = 56
    SPIN = 40000
    HB = 98304; CNT = 160000; PS = P.ps
    a.raw(".p2align 8"); a.raw(f".type {KN},@function"); a.label(KN)
    a("s_cmp_ge_u32 s2, 256"); a("s_cbranch_scc1 L_END")
    if P.scr: a("s_lshl_b32 s22, s2, 3"); a("s_lshr_b32 s2, s2, 5"); a("s_or_b32 s2, s2, s22"); a("s_and_b32 s2, s2, 255")
    pf = Prof(a, P.prof)
    pf.rt(0); pf.stamp(1)
    a("s_load_dwordx8 s[4:11], s[0:1], 0")
    a("s_load_dwordx8 s[12:19], s[0:1], 32")
    a("v_lshrrev_b32 v1, 6, v0"); a("v_and_b32 v2, 63, v0"); a("v_readfirstlane_b32 s3, v1")
    a("s_and_b32 s22, s2, 7"); a("s_lshr_b32 s23, s2, 3")
    a("s_and_b32 s20, s22, 1"); a("s_lshl_b32 s20, s20, 3"); a("s_and_b32 s21, s23, 7"); a("s_add_u32 s20, s20, s21")
    a("s_lshr_b32 s21, s22, 1"); a("s_lshl_b32 s21, s21, 2"); a("s_lshr_b32 s40, s23, 3"); a("s_add_u32 s21, s21, s40")
    a("s_cmp_lt_u32 s3, 4"); a("s_cbranch_scc1 L_COMP")
    if P.rot1 == 0: a("s_mov_b32 s41, 0")
    elif P.rot1 == 1: a("s_add_u32 s41, s20, s21"); a("s_and_b32 s41, s41, 15")
    else:
        a("s_lshr_b32 s41, s22, 1"); a("s_lshl_b32 s41, s41, 2"); a("s_lshl_b32 s42, s22, 3"); a("s_add_u32 s41, s41, s42")
        if P.rot1 == 3: a("s_add_u32 s42, s20, s21"); a("s_and_b32 s42, s42, 1"); a("s_lshl_b32 s42, s42, 1"); a("s_add_u32 s41, s41, s42")
        a("s_and_b32 s41, s41, 15")
    a("s_and_b32 s40, s3, 1")
    def table(dst, t0, sh):
        A, Q, J, Pp, B = [f"v{t0+i}" for i in range(5)]
        a(f"v_subrev_u32 {A}, 7, v2"); a(f"v_mul_u32_u24 {Q}, 43, {A}"); a(f"v_lshrrev_b32 {Q}, 7, {Q}")
        a(f"v_mul_u32_u24 {Pp}, 3, {Q}"); a(f"v_sub_u32 {Pp}, {A}, {Pp}")
        a(f"v_subrev_u32 {B}, 28, v2"); a(f"v_lshrrev_b32 {J}, 2, {B}"); a(f"v_and_b32 {B}, 3, {B}"); a(f"v_add_u32 {B}, 3, {B}")
        a("v_cmp_gt_u32 vcc, 28, v2")
        a(f"v_cndmask_b32 {J}, {J}, {Q}, vcc"); a(f"v_cndmask_b32 {Pp}, {B}, {Pp}, vcc"); a(f"v_add_u32 {J}, 1, {J}")
        a("v_cmp_gt_u32 vcc, 7, v2")
        a(f"v_cndmask_b32 {J}, {J}, 0, vcc"); a(f"v_cndmask_b32 {Pp}, {Pp}, v2, vcc")
        a(f"v_add_u32 {J}, s21, {J}"); a(f"v_and_b32 {J}, 7, {J}"); a(f"v_mul_u32_u24 {J}, 7, {J}"); a(f"v_add_u32 {J}, {J}, {Pp}")
        a(f"v_lshlrev_b32 v{dst}, {sh}, {J}")
    def fbit(v): return 1 + (v - 7) // 3 if v < 28 else 9 + (v - 28) // 4
    def st_setup():
        a("s_lshr_b32 s68, s22, 2"); a("s_mul_i32 s68, s68, 1792"); a("s_mul_i32 s69, s23, 28"); a("s_add_u32 s68, s68, s69")
        a("s_and_b32 s69, s22, 1"); a("s_mul_i32 s69, s69, 896"); a("s_add_u32 s68, s68, s69")
        a("s_and_b32 s69, s3, 3"); a("s_mul_i32 s69, s69, 7"); a("s_add_u32 s68, s68, s69"); a("s_lshl_b32 s68, s68, 11")
        a("s_bfe_u32 s69, s22, 0x10001"); a("s_lshl_b32 s69, s69, 10"); a("s_add_u32 s68, s68, s69")
        a("s_add_u32 s68, s10, s68"); a("s_addc_u32 s69, s11, 0")
    st_at = [int(x) for x in P.st.split(",")] if P.st else []
    def st_rows(i):
        if st_at and i == min(st_at): st_setup()
        for r, w in enumerate(st_at):
            if w == i:
                for j in range(0, 1024, P.sts): a(f"s_load_dword s96, s[68:69], {r*2048 + j}")
    a("s_cmp_gt_u32 s3, 5"); a("s_cbranch_scc1 L_LOADA")
    a("v_bfe_u32 v4, v2, 2, 2"); a("v_mul_u32_u24 v4, 7168, v4")
    a("v_lshrrev_b32 v3, 4, v2"); a("v_lshl_add_u32 v4, v3, 6, v4")
    a("v_and_b32 v5, 3, v2"); a("v_lshl_add_u32 v4, v5, 4, v4")
    a("s_mul_i32 s44, s21, 448"); a("s_lshl_b32 s45, s40, 8"); a("s_add_u32 s44, s44, s45")
    a("v_add_u32 v8, s44, v4"); a("v_xor_b32 v4, 32, v8")
    for j in range(1, 16): a(f"v_add_u32 v{8+j}, {j*28672}, " + ("v4" if j & 2 else "v8"))
    KS = 64 * 7168
    a(f"s_mul_i32 s41, s41, {KS}")
    a("s_lshl_b32 s42, s40, 10"); a(f"s_add_u32 s42, s42, 16384")
    a("s_lshl_b32 s45, s40, 4"); a("s_lshr_b32 s45, -1, s45"); a("s_mov_b32 exec_hi, s45")
    a("s_waitcnt lgkmcnt(0)")
    srd(a, 24, 6, W1_BYTES)
    q = VmQ(a)
    def sched(txt):
        d = {}
        if txt:
            for it in txt.split(","):
                w, u = it.split(":"); d.setdefault(int(w), []).append(int(u))
        return d
    tsched = sched(P.t1); t2sched = sched(P.t2)
    def touch_setup():
        a("s_cmp_eq_u32 s40, 0")
        a("s_cselect_b32 s32, s4, s6"); a("s_cselect_b32 s33, s5, s7"); a("s_and_b32 s33, s33, 0xffff")
        a(f"s_mov_b32 s34, {X_BYTES}"); a("s_cmp_eq_u32 s40, 1"); a(f"s_cselect_b32 s34, {W1_BYTES}, s34"); a("s_mov_b32 s35, 0x20000")
        a("s_movk_i32 s52, 256"); a(f"s_cselect_b32 s52, {128*7168}, s52")
        a("v_and_b32 v24, 7, v2"); a("v_lshlrev_b32 v24, 11, v24"); a("v_bfe_u32 v25, v2, 3, 1"); a("v_lshl_add_u32 v24, v25, 7, v24")
        a("s_lshl_b32 s50, s2, 14"); a("v_add_u32 v24, s50, v24")
        a("v_min_u32 v25, 27, v2"); a("v_lshlrev_b32 v25, 7, v25")
        a("s_lshr_b32 s50, s2, 1"); a("s_mul_i32 s50, s50, 7168"); a("s_and_b32 s51, s2, 1"); a("s_mul_i32 s51, s51, 3584"); a("s_add_u32 s50, s50, s51")
        a("v_add_u32 v25, s50, v25")
        a("s_cmp_eq_u32 s40, 0"); a("s_cselect_b64 vcc, -1, 0"); a("v_cndmask_b32 v24, v25, v24, vcc")
    def touch(u):
        a(f"s_mul_i32 s50, s52, {u}")
        a(f"buffer_load_dword v26, v24, s[32:35], s50 offen"); q.issue()
    def touch2_setup():
        a("v_bfe_u32 v27, v2, 3, 2"); a("v_and_b32 v25, 7, v2"); a("v_lshlrev_b32 v25, 7, v25"); a("v_lshl_add_u32 v27, v27, 11, v25")
        a("s_lshr_b32 s53, s22, 2"); a(f"s_mul_i32 s53, s53, 1792"); a("s_lshl_b32 s54, s23, 3"); a("s_add_u32 s53, s53, s54")
        a("s_lshl_b32 s54, s40, 2"); a("s_add_u32 s53, s53, s54")
        a("s_and_b32 s54, s22, 1"); a(f"s_mul_i32 s54, s54, 896"); a("s_add_u32 s53, s53, s54"); a("s_lshl_b32 s53, s53, 11")
        a("s_bfe_u32 s54, s22, 0x10001"); a("s_lshl_b32 s54, s54, 10"); a("s_add_u32 s53, s53, s54")
    def touch2(u):
        a(f"s_add_u32 s54, s53, {u*256*2048}")
        a(f"buffer_load_dword v26, v27, s[28:31], s54 offen"); q.issue()
    def issueB(s):
        for j in range(16):
            a(f"s_add_u32 m0, s42, {((s + 2) % 3) * REG + j*2048}")
            if j == 0: a(f"s_add_u32 s46, s41, {KS}")
            elif j == 1: a(f"s_cmp_eq_u32 s46, {16*KS}")
            else: a("s_nop 0")
            a(f"buffer_load_dwordx4 v{8+j}, s[24:27], s41 offen lds")
            q.issue(("a", s) if j == 15 else None)
            if j == 1: a("s_cselect_b32 s46, 0, s46")
        a("s_mov_b32 s41, s46")
    pf.stamp(2)
    for i in range(16):
        if i >= 2: q.wait(("a", i - 2)); a("s_barrier")
        issueB(i)
        if i == 0:
            srd(a, 28, 10, W2_BYTES)
            if tsched: touch_setup()
        if i == 2 and t2sched: touch2_setup()
        st_rows(i)
        for u in tsched.get(i, []): touch(u)
        for u in t2sched.get(i, []): touch2(u)
    pf.stamp(3)
    a("s_mov_b64 exec, -1")
    a("v_lshrrev_b32 v3, 4, v2")
    a("v_bfe_u32 v4, v2, 1, 3"); a("v_lshlrev_b32 v5, 1, v3"); a("v_xor_b32 v4, v4, v5"); a("v_lshlrev_b32 v4, 5, v4")
    a("v_and_b32 v5, 1, v2"); a("v_lshl_add_u32 v4, v5, 4, v4")
    a("v_lshl_add_u32 v4, v3, 11, v4")
    a("s_lshr_b32 s44, s21, 3"); a(f"s_mul_i32 s44, s44, {1792*2048}")
    a("s_and_b32 s45, s21, 7"); a("s_lshl_b32 s46, s45, 8"); a("s_add_u32 s44, s44, s46")
    a("v_add_u32 v30, s44, v4")
    for j in range(1, 8): a(f"v_add_u32 v{30+j}, {j*8192}, v30")
    a("s_mul_i32 s41, s45, 7"); a("s_add_u32 s41, s41, s40"); a("s_lshl_b32 s41, s41, 16")
    table(29, 40, 16); a("s_mov_b32 s49, s40")
    a("s_lshl_b32 s42, s40, 13")
    a("v_lshlrev_b32 v38, 4, v2"); a("v_add_u32 v38, s42, v38"); a("v_add_u32 v39, 0x10000, v38")
    NR = P.nr
    def issueW(s, loop=False):
        reg = (not loop) and 8 <= s < 8 + NR
        for j in range(8):
            if not reg: a(f"s_add_u32 m0, s42, {(0 if loop else (s % NB2) * 16384) + j*1024}")
            if j == 0: a("s_add_u32 s49, s49, 2")
            elif j == 1: a("v_readlane_b32 s46, v29, s49")
            elif not reg: a("s_nop 0")
            if not loop and q.n - q.done >= 63:
                a("s_waitcnt vmcnt(55)"); q.done = q.n - 55
            if reg: a(f"buffer_load_dwordx4 {vr(40 + (s-8)*32 + j*4, 4)}, v{30+j}, s[28:31], s41 offen")
            else: a(f"buffer_load_dwordx4 v{30+j}, s[28:31], s41 offen lds")
            if not loop: q.issue(("w", s) if j == 7 else None)
        a("s_mov_b32 s41, s46")
    q.wait(("a", 14)); a("s_barrier")
    for s in (0, 1, 2): issueW(s)
    q.wait(("a", 15)); a("s_barrier")
    for u in t2sched.get(16, []): touch2(u)
    for s in range(3, P.wpre): issueW(s)
    a("s_barrier")
    for u in t2sched.get(17, []): touch2(u)
    assert NR == 0
    q.wait(("w", 0))
    pf.stamp(4)
    a("s_barrier")
    pf.stamp(5)
    for s in range(max(3, P.wpre), 6): issueW(s)
    q.wait(("w", 1)); a("s_barrier")
    for s in (6, 7): issueW(s)
    for s in range(1, NR + 1):
        q.wait(("w", s + 1)); a("s_barrier")
        q.wait(("w", s + 7))
        for j in range(8):
            a(f"ds_write_b128 v{38 + ((s-1) >> 2)}, {vr(40 + (s-1)*32 + j*4, 4)} offset:{((s-1) & 3)*16384 + j*1024}")
    a(f"s_add_u32 s42, s42, {NR*16384}")
    a(f"s_mov_b32 s47, {NR + 1}")
    a("s_waitcnt lgkmcnt(0)")
    a.label("L_WLOOP")
    a("s_waitcnt vmcnt(40)"); a("s_barrier")
    issueW(0, True)
    a("s_add_u32 s42, s42, 16384"); a("s_and_b32 s42, s42, 0x1ffff")
    a("s_add_u32 s47, s47, 1"); a("s_cmp_lt_u32 s47, 21"); a("s_cbranch_scc1 L_WLOOP")
    for s in range(21, 27):
        a(f"s_waitcnt vmcnt({(26 - s) * 8})"); a("s_barrier")
    pf.dump(); a("s_endpgm")
    a.label("L_LOADA")
    a("v_lshrrev_b32 v3, 3, v2")
    a("v_and_b32 v4, 7, v2"); a("v_xor_b32 v4, v4, v3"); a("v_lshlrev_b32 v4, 4, v4")
    a("v_lshl_add_u32 v4, v3, 11, v4")
    a("s_lshl_b32 s44, s20, 18"); a("s_lshl_b32 s45, s40, 17"); a("s_add_u32 s44, s44, s45")
    a("v_add_u32 v8, s44, v4")
    for j in range(1, 8): a(f"v_add_u32 v{8+j}, {j*16384}, v8")
    a("s_lshl_b32 s41, s41, 7")
    a("s_lshl_b32 s42, s40, 13")
    a("s_waitcnt lgkmcnt(0)")
    srd(a, 24, 4, X_BYTES)
    q = VmQ(a)
    srd(a, 36, 16, 256)
    srd(a, 56, 18, WS_SZ)
    a("s_lshl_b32 s60, s20, 4"); a("s_add_u32 s61, s60, s21")
    a("s_lshl_b32 s62, s61, 10"); a(f"s_add_u32 s62, s62, {XFL}")
    a("v_lshlrev_b32 v40, 3, v2"); a("s_lshl_b32 s63, s40, 9"); a("s_add_u32 s63, s63, s62")
    a("v_mov_b32 v42, 0"); a("v_mov_b32 v43, 0"); a("v_mov_b32 v44, 1")
    a("buffer_store_dwordx2 v[42:43], v40, s[56:59], s63 offen sc1"); q.issue()
    a(f"v_mov_b32 v41, {CNT}"); a("ds_write_b32 v41, v42"); a("s_waitcnt lgkmcnt(0)")
    if P.warmh:
        a("s_mul_i32 s64, s20, 112"); a("s_mul_i32 s65, s21, 7"); a("s_add_u32 s64, s64, s65"); a("s_lshl_b32 s64, s64, 13")
        a("s_lshl_b32 s65, s40, 11"); a("s_add_u32 s64, s64, s65")
        a("v_lshlrev_b32 v45, 4, v2")
        for i in range(4): a(f"v_mov_b32 v{48+i}, -1")
        a("s_lshl_b32 s66, s61, 15"); a(f"s_add_u32 s66, s66, {XCH}"); a("s_add_u32 s66, s66, s65")
    def issueA(s):
        if P.warmh & 1 and s >= 2:
            for j in range(2):
                a(f"buffer_store_dwordx4 v[48:51], v45, s[56:59], s64 offen offset:{j*1024}{P.wsc}"); q.issue()
            a("s_add_u32 s64, s64, 4096")
        if P.warmh & 2 and 2 <= s < 10:
            for j in range(2):
                a(f"buffer_store_dwordx4 v[48:51], v45, s[56:59], s66 offen offset:{j*1024}{P.wsc}"); q.issue()
            a("s_add_u32 s66, s66, 4096")
        for j in range(8):
            a(f"s_add_u32 m0, s42, {((s + 2) % 3) * REG + j*1024}")
            if j == 0: a("s_add_u32 s46, s41, 128")
            elif j == 1: a("s_and_b32 s46, s46, 2047")
            else: a("s_nop 0")
            a(f"buffer_load_dwordx4 v{8+j}, s[24:27], s41 offen lds")
            q.issue(("a", s) if j == 7 else None)
        a("s_mov_b32 s41, s46")
    pf.stamp(2)
    issueA(0); issueA(1)
    pf.stamp(3)
    for i in range(17):
        if i < 16: q.wait(("a", i))
        a("s_barrier")
        if i + 2 < 16 and i != 0 or i == 0: pass
        nxt = i + 2
        if nxt < 16: issueA(nxt); st_rows(nxt)
    pf.stamp(4)
    a("s_cmp_eq_u32 s40, 1"); a("s_cbranch_scc1 L_AEND")
    a(f"s_mov_b32 s51, {SPIN if P.mark else 1}"); a("s_mov_b32 s52, " + ("16" if P.mark == 2 else "0x01010101"))
    a("v_lshlrev_b32 v3, 2, v2")
    a("s_mov_b64 exec, " + ("1" if P.mark == 2 else "15"))
    a.label("L_MARK")
    a("buffer_load_dword v6, v3, s[36:39], s60 offen sc1")
    a("s_sub_u32 s51, s51, 1")
    a("s_waitcnt vmcnt(0)")
    a(("v_cmp_gt_u32" if P.mark == 2 else "v_cmp_ne_u32") + " vcc, s52, v6")
    a("s_cbranch_vccz L_MARKD")
    a("s_cmp_lg_u32 s51, 0"); a("s_cbranch_scc1 L_MARK")
    a.label("L_MARKD")
    a("s_mov_b64 exec, 0xffff")
    a("s_and_b32 s47, s21, 7"); a("v_sub_u32 v5, s47, v2"); a("v_and_b32 v5, 7, v5"); a("v_lshlrev_b32 v5, 2, v5"); a("v_lshl_add_u32 v5, v2, 10, v5")
    a("s_and_b32 s46, s61, 0xf8"); a("s_lshl_b32 s46, s46, 10"); a(f"s_add_u32 s46, s46, {XFL}")
    a("s_mov_b32 s48, 0")
    a("s_barrier")
    pf.stamp(5)
    np_ = [0]
    def poll(j):
        n = np_[0]; np_[0] += 1
        a(f"s_mov_b32 s51, {SPIN}")
        a.label(f"L_POLL{n}")
        a(f"s_bitcmp1_b32 s48, {j}"); a(f"s_cbranch_scc1 L_POLLD{n}")
        a("buffer_load_dword v6, v3, s[56:59], s62 offen sc1")
        a("s_sub_u32 s51, s51, 1")
        a("s_waitcnt vmcnt(0)")
        a("v_cmp_eq_u32 vcc, 1, v6")
        a("s_mov_b32 s48, vcc_lo")
        a("s_cmp_lg_u32 s51, 0"); a(f"s_cbranch_scc1 L_POLL{n}")
        a.label(f"L_POLLD{n}")
    iss = {}
    for v in range(7, U): iss[v] = max(v - PD, P.l1 - 1)
    have = []
    for s in range(27):
        lim = 2*s + 1 if 2*s + 3 < 8 else 2*s + 2
        for v in range(7, U):
            if iss[v] <= lim and fbit(v) not in have:
                if fbit(v) > 8: assert 2*s + 1 > PS
                have.append(fbit(v)); poll(fbit(v))
                if len(have) == 1: pf.stamp(6)
        if len(have) == 14 and not P.prof: break
        a("s_barrier")
    a.label("L_AEND")
    a("s_waitcnt vmcnt(0) lgkmcnt(0)")
    pf.dump(); a("s_endpgm")
    a.label("L_COMP")
    ACC = 128; XF = [32, 76]; WF = [48, 92]
    if P.pfi:
        a("s_getpc_b64 s[56:57]")
        a.label("L_PC")
        a(f"s_sub_u32 s56, s56, L_PC-{KN}"); a("s_subb_u32 s57, s57, 0")
        a("s_lshl_b32 s58, s23, 10"); a("s_lshl_b32 s59, s3, 8"); a("s_add_u32 s58, s58, s59")
        for c in range(P.pfi):
            a(f"s_min_u32 s59, s58, L_END-{KN}-192")
            a("s_add_u32 s68, s56, s59"); a("s_addc_u32 s69, s57, 0")
            for j in range(4): a(f"s_load_dword s96, s[68:69], {j*64}")
            a("s_add_u32 s58, s58, 32768")
    a("s_and_b32 s40, s3, 1"); a("s_lshr_b32 s41, s3, 1")
    a("v_and_b32 v12, 15, v2"); a("v_lshrrev_b32 v13, 4, v2")
    a("s_mul_i32 s42, s21, 448"); a("s_lshl_b32 s43, s41, 5"); a("s_add_u32 s43, s43, s42")
    a("s_lshl_b32 s44, s41, 6"); a("s_add_u32 s42, s42, s44")
    a("v_lshlrev_b32 v14, 3, v13")
    a("s_lshl_b32 s62, s20, 4"); a("s_add_u32 s62, s62, s21"); a("s_lshl_b32 s62, s62, 2"); a("s_add_u32 s62, s62, s3")
    a("s_lshr_b32 s63, s62, 2"); a("s_lshl_b32 s63, s63, 3"); a("s_add_u32 s63, s63, s3"); a("s_lshl_b32 s63, s63, 7"); a(f"s_add_u32 s63, s63, {XFL + 128}")
    a("s_waitcnt lgkmcnt(0)")
    srd(a, 28, 8, F * 2)
    for nt in range(7):
        a(f"buffer_load_dwordx2 {vr(XF[1] + nt*2, 2)}, v14, s[28:31], {'s42' if nt < 6 else 's43'} offen offset:{64 + (nt>>1)*128 + (nt&1)*32 if nt < 6 else 0}")
    srd(a, 32, 18, WS_SZ)
    a("v_and_b32 v15, 7, v12"); a("v_xor_b32 v15, v15, v13"); a("v_lshlrev_b32 v15, 4, v15"); a("v_lshl_add_u32 v15, v12, 7, v15")
    a("s_lshl_b32 s43, s40, 13"); a(f"s_add_u32 s43, s43, {2*REG}")
    a("v_add_u32 v4, s43, v15"); a("v_xor_b32 v5, 64, v4")
    a("v_lshlrev_b32 v15, 12, v13")
    a("v_bfe_u32 v16, v2, 2, 2"); a("v_lshl_add_u32 v15, v16, 6, v15")
    a("v_and_b32 v16, 3, v2"); a("v_lshl_add_u32 v15, v16, 3, v15")
    a("v_and_b32 v16, 1, v13"); a("v_lshl_add_u32 v15, v16, 5, v15")
    a("s_lshl_b32 s44, s41, 8"); a(f"s_add_u32 s44, s44, {2*REG + 16384}")
    a("v_add_u32 v6, s44, v15"); a("v_xor_b32 v7, 32, v6")
    a("s_lshl_b32 s44, s41, 5"); a("v_xor_b32 v15, s44, v15"); a(f"v_add_u32 v8, {2*REG + 16384}, v15")
    table(25, 26, 13)
    a("s_lshr_b32 s45, s21, 3"); a("s_mul_i32 s44, s20, 112"); a("s_mul_i32 s45, s45, 56"); a("s_add_u32 s44, s44, s45"); a("s_lshl_b32 s44, s44, 13")
    a("v_add_u32 v25, s44, v25")
    a(f"s_mov_b32 s61, {2*REG}"); a("s_mov_b32 s60, 0")
    a("s_waitcnt vmcnt(0)")
    for nt in range(7):
        b = XF[1] + nt*2; t = ACC + nt*16
        a(f"v_lshlrev_b32 v{t}, 16, v{b}"); a(f"v_and_b32 v{t+1}, 0xffff0000, v{b}")
        a(f"v_lshlrev_b32 v{t+2}, 16, v{b+1}"); a(f"v_and_b32 v{t+3}, 0xffff0000, v{b+1}")
        for mt in range(1, 4):
            for r in (0, 2): a(f"v_pk_mov_b32 {vr(t+mt*4+r,2)}, {vr(t+r,2)}, {vr(t+r,2)} op_sel:[0,1]")
    def reads1(ks):
        out = []
        for mt in range(4):
            out.append(f"ds_read_b128 {vr(XF[ks] + mt*4, 4)}, v{4+ks} offset:{mt*2048}")
        for nt in range(7):
            for hf in range(2):
                out.append(f"ds_read_b64_tr_b16 {vr(WF[ks] + nt*4 + hf*2, 2)}, v{8 if nt == 6 else 6 + (nt&1)} offset:{(8*ks+hf)*2048 + (256 + (nt>>1)*512 if nt < 6 else 0)}")
        return out
    srd(a, 36, 16, 256)
    a("v_mov_b32 v18, 1"); a("v_mov_b32 v19, 0"); a("s_lshr_b32 s67, s62, 2")
    a("s_barrier")
    pf.st2(2,0)
    for r in reads1(0): a(r)
    a("s_cmp_lg_u32 s3, 0"); a("s_cbranch_scc1 L_LOOP1")
    if P.mark == 1: a("s_mov_b64 exec, 1"); a("buffer_store_byte v18, v19, s[36:39], s67 offen sc1"); a("s_mov_b64 exec, -1")
    if P.mark == 2: a("s_mov_b64 exec, 1"); a("s_lshl_b32 s68, s20, 4"); a("buffer_atomic_add v18, v19, s[36:39], s68 offen sc1"); a("s_mov_b64 exec, -1")
    a.label("L_LOOP1")
    for fs in [0, 1] * P.un1:
        a("s_waitcnt lgkmcnt(0)")
        if fs == 1: a("s_barrier")
        rd = reads1(1 - fs)
        if fs == 0:
            rd += [f"s_add_u32 s64, s61, {REG}", f"s_cmp_eq_u32 s64, {3*REG}", "s_cselect_b32 s64, 0, s64", "s_sub_u32 s65, s64, s61", "s_mov_b32 s61, s64",
                   "v_add_u32 v4, s65, v4", "v_add_u32 v6, s65, v6", "v_add_u32 v7, s65, v7", "v_add_u32 v8, s65, v8", "v_add_u32 v5, s65, v5"]
        else:
            rd += ["s_add_u32 s60, s60, 1", "s_cmp_lt_u32 s60, 16"]
        i = 0
        for nt in range(7):
            for mt in range(4):
                acc = vr(ACC + (nt*4+mt)*4, 4)
                a(f"v_mfma_f32_16x16x32_bf16 {acc}, {vr(WF[fs]+nt*4, 4)}, {vr(XF[fs]+mt*4, 4)}, {acc}")
                if i < len(rd): a(rd[i]); i += 1
        assert i == len(rd)
    a("s_cbranch_scc1 L_LOOP1")
    pf.st2(3,2)
    c0 = -2.0 * 0.7978845608028654 * 1.4426950408889634
    c1 = c0 * 0.044715
    a(f"s_mov_b32 s46, {f32(c1)}"); a(f"s_mov_b32 s47, {f32(c0)}")
    a("s_mul_i32 s48, s20, 112"); a("s_mul_i32 s49, s21, 7"); a("s_add_u32 s48, s48, s49")
    a("s_lshl_b32 s66, s48, 13")
    a("s_lshl_b32 s49, s40, 12"); a("s_add_u32 s48, s66, s49")
    a("v_lshlrev_b32 v14, 4, v2")
    a("s_lshl_b32 s49, s41, 3"); a("v_add_u32 v15, s49, v14")
    a("s_mov_b32 s50, s48")
    a("s_lshl_b32 s49, s41, 13"); a("s_add_u32 s51, s48, s49"); a("s_add_u32 s51, s51, 8192")
    a("s_add_u32 s52, s51, 16384"); a("s_add_u32 s53, s51, 32768")
    srd(a, 28, 12, D * 2)
    a("s_lshr_b32 s54, s21, 3"); a("s_lshl_b32 s54, s54, 7"); a("s_and_b32 s55, s21, 7"); a("s_lshl_b32 s55, s55, 8"); a("s_add_u32 s54, s54, s55")
    a("v_lshrrev_b32 v16, 5, v2"); a("v_lshlrev_b32 v16, 3, v16")
    a("s_waitcnt lgkmcnt(0)")
    for c in range(8):
        a(f"buffer_load_dwordx2 {vr(96 + c*2, 2)}, v16, s[28:31], s54 offen offset:{c*16}")
    a("s_lshl_b32 s49, s40, 12"); a(f"s_add_u32 s49, s49, {HB}"); a("v_add_u32 v21, s49, v15")
    a("s_lshl_b32 s55, s41, 13"); a("s_add_u32 s49, s49, s55"); a("v_add_u32 v20, s49, v14")
    TMP = 32
    def gelu4(t, dst, tmp):
        for h in range(2):
            x = vr(t + 2*h, 2); u = vr(tmp + 2*h, 2); a(f"v_pk_mul_f32 {u}, {x}, {x}")
        for h in range(2):
            u = vr(tmp + 2*h, 2); a(f"v_pk_fma_f32 {u}, {u}, s[46:47], s[46:47] op_sel:[0,0,1] op_sel_hi:[1,0,1]")
        for h in range(2):
            x = vr(t + 2*h, 2); u = vr(tmp + 2*h, 2); a(f"v_pk_mul_f32 {u}, {u}, {x}")
        for j in range(4): a(f"v_exp_f32 v{tmp+j}, v{tmp+j}")
        for h in range(2):
            u = vr(tmp + 2*h, 2); a(f"v_pk_add_f32 {u}, {u}, 1.0 op_sel_hi:[1,0]")
        for j in range(4): a(f"v_rcp_f32 v{tmp+j}, v{tmp+j}")
        for h in range(2):
            x = vr(t + 2*h, 2); u = vr(tmp + 2*h, 2); a(f"v_pk_mul_f32 {u}, {u}, {x}")
        for h in range(2):
            a(f"v_cvt_pk_bf16_f32 v{dst+h}, v{tmp+2*h}, v{tmp+2*h+1}")
    k = 0
    for mt in range(4):
        dst = 64 + (k % 8) * 4; k += 1
        gelu4(ACC + (6*4+mt)*4, dst, TMP)
        a(f"buffer_store_dwordx2 {vr(dst,2)}, v15, s[32:35], s50 offen offset:{mt*1024} sc1")
        a(f"ds_write_b64 v21, {vr(dst,2)} offset:{mt*1024}")
    for pi in range(3):
        for mt in range(4):
            dst = 64 + (k % 8) * 4; k += 1
            gelu4(ACC + (2*pi*4+mt)*4, dst, TMP)
            gelu4(ACC + ((2*pi+1)*4+mt)*4, dst + 2, TMP + 4)
            a(f"buffer_store_dwordx4 {vr(dst,4)}, v14, s[32:35], s{51+pi} offen offset:{mt*1024} sc1")
            a(f"ds_write_b128 v20, {vr(dst,4)} offset:{8192 + pi*16384 + mt*1024}")
    pf.st2(0,3)
    A2 = 32; W2 = [96, 128]; HF = 160
    a("s_lshr_b32 s40, s21, 3")
    a("s_and_b32 s41, s21, 7")
    a("v_and_b32 v15, 1, v13"); a("v_lshrrev_b32 v17, 1, v13")
    a("s_lshl_b32 s42, s3, 11")
    a("v_lshlrev_b32 v16, 4, v12"); a("v_lshl_add_u32 v16, v15, 10, v16"); a("v_lshl_add_u32 v16, v17, 8, v16"); a("v_add_u32 v16, s42, v16")
    for v in range(7, 15): a(f"v_readlane_b32 s{88 + v - 7}, v25, {v}")
    a("v_readlane_b32 s66, v25, 15"); a("s_mov_b32 s45, 15")
    a("v_lshrrev_b32 v3, 2, v12")
    a("v_lshl_add_u32 v4, v17, 2, v3"); a("v_lshlrev_b32 v4, 8, v4")
    a("v_lshl_add_u32 v3, v3, 1, v15"); a("v_lshl_add_u32 v4, v3, 5, v4")
    a("v_and_b32 v3, 3, v2"); a("v_lshl_add_u32 v4, v3, 3, v4")
    a("s_lshl_b32 s43, s40, 7"); a("v_xor_b32 v4, s43, v4")
    for t in range(1, 4): a(f"v_xor_b32 v{4+t}, {t*64}, v4")
    a("v_sub_u32 v19, s41, v2"); a("v_and_b32 v19, 7, v19"); a("v_lshlrev_b32 v19, 2, v19"); a("v_lshl_add_u32 v19, v2, 10, v19")
    a("s_and_b32 s46, s67, 0xf8"); a("s_lshl_b32 s46, s46, 10"); a(f"s_add_u32 s46, s46, {XFL}")
    a("s_waitcnt vmcnt(16)")
    for c in range(8):
        t = A2 + c*4; b = 96 + c*2
        a(f"v_lshlrev_b32 v{t}, 16, v{b}"); a(f"v_and_b32 v{t+1}, 0xffff0000, v{b}")
        a(f"v_lshlrev_b32 v{t+2}, 16, v{b+1}"); a(f"v_and_b32 v{t+3}, 0xffff0000, v{b+1}")
    a(f"v_add_u32 v22, {HB}, v16"); a(f"v_mov_b32 v23, {CNT}")
    a("s_cmp_lg_u32 s3, 0")
    a("s_waitcnt vmcnt(8) lgkmcnt(0)")
    a("s_barrier")
    a("s_cbranch_scc1 L_NOPUBA")
    a("s_mov_b64 exec, 255"); a("buffer_store_dword v18, v19, s[32:35], s46 offen sc1"); a("s_mov_b64 exec, -1")
    a.label("L_NOPUBA")
    pf.st2(4,0)
    q = VmQ(a)
    q.issue("st")
    def publish():
        q.wait("st")
        a("s_mov_b64 exec, 1"); a("ds_add_rtn_u32 v24, v23, v18"); a("s_mov_b64 exec, 255")
        a("s_waitcnt lgkmcnt(0)")
        a("v_readfirstlane_b32 s47, v24")
        a("s_cmp_lg_u32 s47, 3"); a("s_cbranch_scc1 L_NOPUB")
        a("buffer_store_dword v18, v19, s[32:35], s46 offen offset:32 sc1")
        a.label("L_NOPUB")
        a("s_mov_b64 exec, -1")
    def hload(v, part=3):
        so = f"s{88 + v - 7}" if v < 15 else "s66"
        if part & 1:
            a(f"buffer_load_dwordx4 {vr(HF + (v % PD)*8, 4)}, v16, s[32:35], {so} offen{P.hsc}")
            q.issue()
        if part & 2:
            a(f"buffer_load_dwordx4 {vr(HF + (v % PD)*8 + 4, 4)}, v16, s[32:35], {so} offen offset:512{P.hsc}")
            q.issue(("h", v))
            if 15 <= v < 55: a("s_add_u32 s45, s45, 1"); a("v_readlane_b32 s66, v25, s45")
    def order(u):
        if u == U - 1: return [(0, 2), (0, 3), (1, 2), (1, 3), (0, 0), (0, 1), (1, 0), (1, 1)]
        return [(kk, t) for kk in range(2) for t in range(4)]
    def reads2(u):
        out = []
        base = ((u >> 1) & 3) * 16384 + (u & 1) * 8192
        for kk, t in order(u):
            for hf in range(2):
                r = f"ds_read_b64_tr_b16 {vr(W2[u & 1] + (kk*4+t)*4 + hf*2, 2)}, v{4+t} offset:{base + kk*2048 + hf*4096}"
                if u % 8 == 0 and u > 0 and hf == 0 and kk == 0: r = f"v_xor_b32 v{4+t}, 0x10000, v{4+t}\n    " + r
                out.append(r)
        return out
    for v in range(7):
        for kk in range(2): a(f"ds_read_b128 {vr(HF + v*8 + kk*4, 4)}, v22 offset:{v*8192 + kk*512}")
    for r in reads2(0): a(r)
    for i in range(32, 64, 2): a(f"v_pk_mov_b32 {vr(A2+i,2)}, 0, 0")
    srd(a, 36, 14, OUT_BYTES)
    def xsend(j):
        a(f"buffer_store_dwordx4 {vr(A2 + 32 + j*4, 4)}, v15, s[32:35], s{46 + j//4} offen offset:{(j%4)*1024} sc1")
    PAT = P.pat.split(",")
    assert len(PAT) == 8 and sum(int(ch) for g in PAT for ch in g if ch.isdigit()) == 16
    def step(u, first=False):
        bar = (u & 1) and u + 1 < U
        if u == PS: publish()
        if bar and ("B" not in P.pat or u < 8): a("s_barrier"); bar = False
        rd = reads2(u + 1) if u + 1 < U else []
        i = 0
        hv = [v for v in range(7, U) if iss[v] == u - 1]
        spread = len(hv) == 1 and u >= 8
        if hv and not spread:
            for v in hv: hload(v)
        if u >= 7: q.wait(("h", u))
        last = None
        for m, (kk, t) in enumerate(order(u)):
            cnt = min(15, 16 - 2*(m+1) + i)
            if last is None or cnt < last: a(f"s_waitcnt lgkmcnt({cnt})"); last = cnt
            acc = vr(A2 + t*16, 16)
            a(f"v_mfma_f32_32x32x16_bf16 {acc}, {vr(W2[u&1]+(kk*4+t)*4, 4)}, {vr(HF + (u % PD)*8 + kk*4, 4)}, {acc}")
            for ch in PAT[m]:
                if ch.isdigit():
                    assert not bar
                    for _ in range(int(ch)):
                        if i < len(rd):
                            if not (P.nord and u >= 8 and (P.nord == 1 or i & 1)): a(rd[i])
                            i += 1; last += 1
                elif ch == "B":
                    if bar: a("s_barrier"); bar = False
                elif ch == "a":
                    if spread: hload(hv[0], 1)
                elif ch == "b":
                    if spread: hload(hv[0], 2)
            if u == U - 1 and m >= 5:
                if m == 5: a("s_nop 5")
                for j in {5: (0, 1, 2), 6: (3, 4, 5), 7: (6, 7)}[m]: xsend(j)
        assert not bar
    for u in range(8): step(u)
    pf.st2(5,0,2)
    a("s_mov_b32 s60, 0")
    a.label("L_LOOP2")
    for u in range(8, 16): step(u)
    if P.prof == 3:
        for k, ix in ((0, 3), (2, 4), (3, 5)):
            a(f"s_cmp_eq_u32 s60, {k}"); a(f"s_cbranch_scc0 L_PSK{k}"); pf.st2(0, 0, ix); a.label(f"L_PSK{k}")
    a("s_add_u32 s60, s60, 1"); a("s_cmp_lt_u32 s60, 5"); a("s_cbranch_scc1 L_LOOP2")
    for v in range(16, 24):
        if ("h", v) in q.tags: q.tags[("h", v + 32)] = q.tags[("h", v)]
    a("v_lshlrev_b32 v15, 4, v2")
    a("s_lshl_b32 s46, s62, 13"); a(f"s_add_u32 s46, s46, {XCH}"); a("s_add_u32 s47, s46, 4096")
    a("s_xor_b32 s48, s46, %d" % (8*4*8192)); a("s_add_u32 s49, s48, 4096")
    a("s_xor_b32 s50, s63, 8192")
    a("v_mov_b32 v3, 0"); a("v_mov_b32 v18, 1")
    seq = [(48, kk, t) for kk in range(2) for t in (2, 3, 0, 1)] if False else [(48, kk, t) for kk in range(2) for t in range(4)]
    seq += [(u, kk, t) for u in range(49, 56) for kk in range(2) for t in (2, 3)]
    nsend = len(seq)
    seq += [(u, kk, t) for u in range(49, 56) for kk in range(2) for t in (0, 1)]
    stage_ok = 24
    pend = []
    TP = [0, 3, 3, 2, 0, 3, 3, 2]
    flagged = False
    for g in range(8):
        grp = seq[g*8:(g+1)*8]; nxtg = seq[(g+1)*8:(g+2)*8]
        rd = []
        for m, (u, kk, t) in enumerate(nxtg):
            base = ((u >> 1) & 3) * 16384 + (u & 1) * 8192
            for hf in range(2):
                rd.append((u >> 1, f"ds_read_b64_tr_b16 {vr(W2[(g+1) & 1] + m*4 + hf*2, 2)}, v{4+t} offset:{base + kk*2048 + hf*4096}"))
        i = 0; last = None
        for m, (u, kk, t) in enumerate(grp):
            n = g*8 + m
            if n == 64 - P.fl:
                assert not pend
                a("s_waitcnt vmcnt(0)"); pf.st2(0,5)
                a("buffer_store_dword v18, v3, s[32:35], s50 offen sc1"); flagged = True
            q.wait(("h", u))
            cnt = min(15, 16 - 2*(m+1) + i)
            if last is None or cnt < last: a(f"s_waitcnt lgkmcnt({cnt})"); last = cnt
            acc = vr(A2 + t*16, 16)
            a(f"v_mfma_f32_32x32x16_bf16 {acc}, {vr(W2[g&1]+m*4, 4)}, {vr(HF + (u % PD)*8 + kk*4, 4)}, {acc}")
            if g == 0 and m == 0: hload(55, 1)
            if g == 0 and m == 4: hload(55, 2)
            if n == nsend + 2: pend = list(range(8)); a("s_nop 3")
            if pend:
                for _ in range(2 if TP[m] == 0 else 1):
                    if pend: xsend(pend.pop(0)); q.issue()
            nx = [st for st, _ in rd[i:i + TP[m] + (TP[m+1] if TP[m] == 0 else 0)]]
            while nx and max(nx) > stage_ok: a("s_barrier"); stage_ok += 1
            for _ in range(TP[m]):
                if i < len(rd): a(rd[i][1]); i += 1; last += 1
        assert i == len(rd)
    assert stage_ok == 27 and not pend
    pf.st2(6,4,6)
    a("s_lshl_b32 s42, s20, 7"); a("s_lshl_b32 s43, s3, 5"); a("s_add_u32 s42, s42, s43")
    a("s_lshl_b32 s42, s42, 11"); a("s_add_u32 s42, s42, s54")
    a("v_and_b32 v16, 31, v2"); a("v_lshlrev_b32 v16, 11, v16"); a("v_lshl_add_u32 v16, v17, 4, v16")
    if not flagged:
        a("s_waitcnt vmcnt(0)")
        pf.st2(0,5)
        a("buffer_store_dword v18, v3, s[32:35], s50 offen sc1")
    a(f"s_mov_b32 s51, {SPIN}")
    a.label("L_XPOLL")
    a("buffer_load_dword v19, v3, s[32:35], s63 offen sc1")
    a("s_sub_u32 s51, s51, 1")
    a("s_waitcnt vmcnt(0)")
    a("v_readfirstlane_b32 s52, v19")
    a("s_cmp_eq_u32 s52, 1"); a("s_cbranch_scc1 L_XDONE")
    a("s_cmp_lg_u32 s51, 0"); a("s_cbranch_scc1 L_XPOLL")
    a.label("L_XDONE")
    pf.st2(0,6)
    for nt in range(8):
        a(f"buffer_load_dwordx4 {vr(HF + nt*4, 4)}, v15, s[32:35], s{48 + nt//4} offen offset:{(nt%4)*1024} sc1")
    for g in range(4):
        t = A2 + g*8; p = HF + g*8
        a(f"s_waitcnt vmcnt({6 - g})")
        for r in (0, 2, 4, 6): a(f"v_pk_add_f32 {vr(t+r,2)}, {vr(t+r,2)}, {vr(p+r,2)}")
        for r in range(4): a(f"v_cvt_pk_bf16_f32 v{p+r}, v{t+2*r}, v{t+2*r+1}")
        a("s_nop 1")
        a(f"v_permlane32_swap_b32 v{p}, v{p+2}"); a(f"v_permlane32_swap_b32 v{p+1}, v{p+3}")
        a(f"buffer_store_dwordx4 {vr(p,4)}, v16, s[36:39], s42 offen offset:{g*32}")
    pf.dump()
    a.label("L_END")
    a("s_endpgm")
    return dict(vgpr=240, lds=163840, block=512)

def main():
    ap = argparse.ArgumentParser()
    ap.add_argument("-o", default="f.s")
    ap.add_argument("--rot1", type=int, default=3)
    ap.add_argument("--t1", default="")
    ap.add_argument("--t2", default="14:0,14:1,15:2,15:3")
    ap.add_argument("--t2split", type=int, default=1)
    ap.add_argument("--l1", type=int, default=3)
    ap.add_argument("--un1", type=int, default=2)
    ap.add_argument("--mark", type=int, default=2)
    ap.add_argument("--nr", type=int, default=0)
    ap.add_argument("--prof", type=int, default=0)
    ap.add_argument("--noh", type=int, default=0)
    ap.add_argument("--wpre", type=int, default=6)
    ap.add_argument("--fl", type=int, default=8)
    ap.add_argument("--st", default="")
    ap.add_argument("--sts", type=int, default=128)
    ap.add_argument("--pfi", type=int, default=1)
    ap.add_argument("--warmh", type=int, default=0)
    ap.add_argument("--wsc", default=" sc1")
    ap.add_argument("--ps", type=int, default=5)
    ap.add_argument("--scr", type=int, default=0)
    ap.add_argument("--pat", default="aB,3,3,2,b,3,3,2")
    ap.add_argument("--nord", type=int, default=0)
    ap.add_argument("--hpos", type=int, default=0)
    ap.add_argument("--hsc", default="sc1")
    P = ap.parse_args()
    if P.hsc: P.hsc = " " + P.hsc
    a = Asm()
    k = gen(a, P)
    hdr = ["; fused MLP: out = gelu(x@w1+b1)@w2+b2 ; h handed between workgroups through d_ws with per-producer flags in d_debug",
           f"; @launch grid=(256,1,1) block=({k['block']},1,1) lds={k['lds']}",
           '.amdgcn_target "amdgcn-amd-amdhsa--gfx950"', ".text", f".globl {KN}"]
    tail = ['.section .rodata,"a"', ".p2align 6", f".amdhsa_kernel {KN}",
            f"  .amdhsa_next_free_vgpr {k['vgpr']}", "  .amdhsa_next_free_sgpr 102",
            f"  .amdhsa_accum_offset {k['vgpr']}", "  .amdhsa_group_segment_fixed_size 0",
            "  .amdhsa_kernarg_size 64", "  .amdhsa_user_sgpr_count 2",
            "  .amdhsa_user_sgpr_kernarg_segment_ptr 1", "  .amdhsa_system_sgpr_workgroup_id_x 1",
            ".end_amdhsa_kernel"]
    open(P.o, "w").write("\n".join(hdr) + "\n" + a.text() + "\n".join(tail) + "\n")

if __name__ == "__main__":
    main()
```

```python
import sys, argparse, struct
from gen import Asm, vr, sr, srd, VmQ, f32, S, D, F, X_BYTES, W1_BYTES, W2_BYTES, H_BYTES, OUT_BYTES

KN = "standalone__dense_activation_gelu__prompt_kernel"
WS_SZ = 64 << 20
XCH = 32 << 20
XFL = 48 << 20
PROF_BASE = 64 << 20

class Prof:
    def __init__(self, a, on):
        self.a = a; self.on = on
    def st2(self, i1, i2, i3=0):
        i = i1 if self.on == 1 else i2 if self.on == 2 else i3
        if self.on and i: self.a(f"s_memtime s[{70+2*i}:{71+2*i}]")
    def stamp(self, i):
        if self.on: self.a(f"s_memtime s[{70+2*i}:{71+2*i}]")
    def rt(self, i):
        if self.on: self.a(f"s_memrealtime s[{70+2*i}:{71+2*i}]")
    def dump(self):
        if not self.on: return
        a = self.a
        a("s_mov_b64 exec, -1")
        a("s_waitcnt vmcnt(0)")
        a("s_memtime s[84:85]"); a("s_memrealtime s[86:87]")
        a("s_waitcnt lgkmcnt(0)")
        a("s_mov_b32 s92, s18"); a("s_and_b32 s93, s19, 0xffff"); a("s_mov_b32 s94, 0x10000000"); a("s_mov_b32 s95, 0x20000")
        a("s_lshl_b32 s90, s2, 4"); a("s_add_u32 s90, s90, s3"); a("s_lshl_b32 s90, s90, 6")
        a(f"s_add_u32 s90, s90, {PROF_BASE}")
        a("v_mov_b32 v1, 0")
        for i in range(9):
            a(f"v_mov_b32 v0, s{70+2*i}")
            a(f"buffer_store_dword v0, v1, s[92:95], s90 offen offset:{4*i}")
        a("s_waitcnt vmcnt(0)")

def gen(a, P):
    REG = 49152
    NST1 = 16
    NST2 = 28; NB2 = 8; PD = 8; U = 56
    SPIN = 40000
    HB = 98304; CNT = 160000; PS = P.ps
    a.raw(".p2align 8"); a.raw(f".type {KN},@function"); a.label(KN)
    a("s_cmp_ge_u32 s2, 256"); a("s_cbranch_scc1 L_END")
    if P.scr: a("s_lshl_b32 s22, s2, 3"); a("s_lshr_b32 s2, s2, 5"); a("s_or_b32 s2, s2, s22"); a("s_and_b32 s2, s2, 255")
    pf = Prof(a, P.prof)
    pf.rt(0); pf.stamp(1)
    a("s_load_dwordx8 s[4:11], s[0:1], 0")
    a("s_load_dwordx8 s[12:19], s[0:1], 32")
    a("v_lshrrev_b32 v1, 6, v0"); a("v_and_b32 v2, 63, v0"); a("v_readfirstlane_b32 s3, v1")
    a("s_and_b32 s22, s2, 7"); a("s_lshr_b32 s23, s2, 3")
    a("s_and_b32 s20, s22, 1"); a("s_lshl_b32 s20, s20, 3"); a("s_and_b32 s21, s23, 7"); a("s_add_u32 s20, s20, s21")
    a("s_lshr_b32 s21, s22, 1"); a("s_lshl_b32 s21, s21, 2"); a("s_lshr_b32 s40, s23, 3"); a("s_add_u32 s21, s21, s40")
    a("s_cmp_lt_u32 s3, 4"); a("s_cbranch_scc1 L_COMP")
    if P.rot1 == 0: a("s_mov_b32 s41, 0")
    elif P.rot1 == 1: a("s_add_u32 s41, s20, s21"); a("s_and_b32 s41, s41, 15")
    else:
        a("s_lshr_b32 s41, s22, 1"); a("s_lshl_b32 s41, s41, 2"); a("s_lshl_b32 s42, s22, 3"); a("s_add_u32 s41, s41, s42")
        if P.rot1 == 3: a("s_add_u32 s42, s20, s21"); a("s_and_b32 s42, s42, 1"); a("s_lshl_b32 s42, s42, 1"); a("s_add_u32 s41, s41, s42")
        a("s_and_b32 s41, s41, 15")
    a("s_and_b32 s40, s3, 1")
    def table(dst, t0, sh):
        A, Q, J, Pp, B = [f"v{t0+i}" for i in range(5)]
        a(f"v_subrev_u32 {A}, 7, v2"); a(f"v_mul_u32_u24 {Q}, 43, {A}"); a(f"v_lshrrev_b32 {Q}, 7, {Q}")
        a(f"v_mul_u32_u24 {Pp}, 3, {Q}"); a(f"v_sub_u32 {Pp}, {A}, {Pp}")
        a(f"v_subrev_u32 {B}, 28, v2"); a(f"v_lshrrev_b32 {J}, 2, {B}"); a(f"v_and_b32 {B}, 3, {B}"); a(f"v_add_u32 {B}, 3, {B}")
        a("v_cmp_gt_u32 vcc, 28, v2")
        a(f"v_cndmask_b32 {J}, {J}, {Q}, vcc"); a(f"v_cndmask_b32 {Pp}, {B}, {Pp}, vcc"); a(f"v_add_u32 {J}, 1, {J}")
        a("v_cmp_gt_u32 vcc, 7, v2")
        a(f"v_cndmask_b32 {J}, {J}, 0, vcc"); a(f"v_cndmask_b32 {Pp}, {Pp}, v2, vcc")
        a(f"v_add_u32 {J}, s21, {J}"); a(f"v_and_b32 {J}, 7, {J}"); a(f"v_mul_u32_u24 {J}, 7, {J}"); a(f"v_add_u32 {J}, {J}, {Pp}")
        a(f"v_lshlrev_b32 v{dst}, {sh}, {J}")
    def fbit(v): return 1 + (v - 7) // 3 if v < 28 else 9 + (v - 28) // 4
    def st_setup():
        a("s_lshr_b32 s68, s22, 2"); a("s_mul_i32 s68, s68, 1792"); a("s_mul_i32 s69, s23, 28"); a("s_add_u32 s68, s68, s69")
        a("s_and_b32 s69, s22, 1"); a("s_mul_i32 s69, s69, 896"); a("s_add_u32 s68, s68, s69")
        a("s_and_b32 s69, s3, 3"); a("s_mul_i32 s69, s69, 7"); a("s_add_u32 s68, s68, s69"); a("s_lshl_b32 s68, s68, 11")
        a("s_bfe_u32 s69, s22, 0x10001"); a("s_lshl_b32 s69, s69, 10"); a("s_add_u32 s68, s68, s69")
        a("s_add_u32 s68, s10, s68"); a("s_addc_u32 s69, s11, 0")
    st_at = [int(x) for x in P.st.split(",")] if P.st else []
    def st_rows(i):
        if st_at and i == min(st_at): st_setup()
        for r, w in enumerate(st_at):
            if w == i:
                for j in range(0, 1024, P.sts): a(f"s_load_dword s96, s[68:69], {r*2048 + j}")
    a("s_cmp_gt_u32 s3, 5"); a("s_cbranch_scc1 L_LOADA")
    a("v_bfe_u32 v4, v2, 2, 2"); a("v_mul_u32_u24 v4, 7168, v4")
    a("v_lshrrev_b32 v3, 4, v2"); a("v_lshl_add_u32 v4, v3, 6, v4")
    a("v_and_b32 v5, 3, v2"); a("v_lshl_add_u32 v4, v5, 4, v4")
    a("s_mul_i32 s44, s21, 448"); a("s_lshl_b32 s45, s40, 8"); a("s_add_u32 s44, s44, s45")
    a("v_add_u32 v8, s44, v4"); a("v_xor_b32 v4, 32, v8")
    for j in range(1, 16): a(f"v_add_u32 v{8+j}, {j*28672}, " + ("v4" if j & 2 else "v8"))
    KS = 64 * 7168
    a(f"s_mul_i32 s41, s41, {KS}")
    a("s_lshl_b32 s42, s40, 10"); a(f"s_add_u32 s42, s42, 16384")
    a("s_lshl_b32 s45, s40, 4"); a("s_lshr_b32 s45, -1, s45"); a("s_mov_b32 exec_hi, s45")
    a("s_waitcnt lgkmcnt(0)")
    srd(a, 24, 6, W1_BYTES)
    q = VmQ(a)
    def sched(txt):
        d = {}
        if txt:
            for it in txt.split(","):
                w, u = it.split(":"); d.setdefault(int(w), []).append(int(u))
        return d
    tsched = sched(P.t1); t2sched = sched(P.t2)
    def touch_setup():
        a("s_cmp_eq_u32 s40, 0")
        a("s_cselect_b32 s32, s4, s6"); a("s_cselect_b32 s33, s5, s7"); a("s_and_b32 s33, s33, 0xffff")
        a(f"s_mov_b32 s34, {X_BYTES}"); a("s_cmp_eq_u32 s40, 1"); a(f"s_cselect_b32 s34, {W1_BYTES}, s34"); a("s_mov_b32 s35, 0x20000")
        a("s_movk_i32 s52, 256"); a(f"s_cselect_b32 s52, {128*7168}, s52")
        a("v_and_b32 v24, 7, v2"); a("v_lshlrev_b32 v24, 11, v24"); a("v_bfe_u32 v25, v2, 3, 1"); a("v_lshl_add_u32 v24, v25, 7, v24")
        a("s_lshl_b32 s50, s2, 14"); a("v_add_u32 v24, s50, v24")
        a("v_min_u32 v25, 27, v2"); a("v_lshlrev_b32 v25, 7, v25")
        a("s_lshr_b32 s50, s2, 1"); a("s_mul_i32 s50, s50, 7168"); a("s_and_b32 s51, s2, 1"); a("s_mul_i32 s51, s51, 3584"); a("s_add_u32 s50, s50, s51")
        a("v_add_u32 v25, s50, v25")
        a("s_cmp_eq_u32 s40, 0"); a("s_cselect_b64 vcc, -1, 0"); a("v_cndmask_b32 v24, v25, v24, vcc")
    def touch(u):
        a(f"s_mul_i32 s50, s52, {u}")
        a(f"buffer_load_dword v26, v24, s[32:35], s50 offen"); q.issue()
    def touch2_setup():
        a("v_bfe_u32 v27, v2, 3, 2"); a("v_and_b32 v25, 7, v2"); a("v_lshlrev_b32 v25, 7, v25"); a("v_lshl_add_u32 v27, v27, 11, v25")
        a("s_lshr_b32 s53, s22, 2"); a(f"s_mul_i32 s53, s53, 1792"); a("s_lshl_b32 s54, s23, 3"); a("s_add_u32 s53, s53, s54")
        a("s_lshl_b32 s54, s40, 2"); a("s_add_u32 s53, s53, s54")
        a("s_and_b32 s54, s22, 1"); a(f"s_mul_i32 s54, s54, 896"); a("s_add_u32 s53, s53, s54"); a("s_lshl_b32 s53, s53, 11")
        a("s_bfe_u32 s54, s22, 0x10001"); a("s_lshl_b32 s54, s54, 10"); a("s_add_u32 s53, s53, s54")
    def touch2(u):
        a(f"s_add_u32 s54, s53, {u*256*2048}")
        a(f"buffer_load_dword v26, v27, s[28:31], s54 offen"); q.issue()
    def issueB(s):
        for j in range(16):
            a(f"s_add_u32 m0, s42, {((s + 2) % 3) * REG + j*2048}")
            if j == 0: a(f"s_add_u32 s46, s41, {KS}")
            elif j == 1: a(f"s_cmp_eq_u32 s46, {16*KS}")
            else: a("s_nop 0")
            a(f"buffer_load_dwordx4 v{8+j}, s[24:27], s41 offen lds")
            q.issue(("a", s) if j == 15 else None)
            if j == 1: a("s_cselect_b32 s46, 0, s46")
        a("s_mov_b32 s41, s46")
    pf.stamp(2)
    for i in range(16):
        if i >= 2: q.wait(("a", i - 2)); a("s_barrier")
        issueB(i)
        if i == 0:
            srd(a, 28, 10, W2_BYTES)
            if tsched: touch_setup()
        if i == 2 and t2sched: touch2_setup()
        st_rows(i)
        for u in tsched.get(i, []): touch(u)
        for u in t2sched.get(i, []): touch2(u)
    pf.stamp(3)
    a("s_mov_b64 exec, -1")
    a("v_lshrrev_b32 v3, 4, v2")
    a("v_bfe_u32 v4, v2, 1, 3"); a("v_lshlrev_b32 v5, 1, v3"); a("v_xor_b32 v4, v4, v5"); a("v_lshlrev_b32 v4, 5, v4")
    a("v_and_b32 v5, 1, v2"); a("v_lshl_add_u32 v4, v5, 4, v4")
    a("v_lshl_add_u32 v4, v3, 11, v4")
    a("s_lshr_b32 s44, s21, 3"); a(f"s_mul_i32 s44, s44, {1792*2048}")
    a("s_and_b32 s45, s21, 7"); a("s_lshl_b32 s46, s45, 8"); a("s_add_u32 s44, s44, s46")
    a("v_add_u32 v30, s44, v4")
    for j in range(1, 8): a(f"v_add_u32 v{30+j}, {j*8192}, v30")
    a("s_mul_i32 s41, s45, 7"); a("s_add_u32 s41, s41, s40"); a("s_lshl_b32 s41, s41, 16")
    table(29, 40, 16); a("s_mov_b32 s49, s40")
    a("s_lshl_b32 s42, s40, 13")
    a("v_lshlrev_b32 v38, 4, v2"); a("v_add_u32 v38, s42, v38"); a("v_add_u32 v39, 0x10000, v38")
    NR = P.nr
    def issueW(s, loop=False):
        reg = (not loop) and 8 <= s < 8 + NR
        for j in range(8):
            if not reg: a(f"s_add_u32 m0, s42, {(0 if loop else (s % NB2) * 16384) + j*1024}")
            if j == 0: a("s_add_u32 s49, s49, 2")
            elif j == 1: a("v_readlane_b32 s46, v29, s49")
            elif not reg: a("s_nop 0")
            if not loop and q.n - q.done >= 63:
                a("s_waitcnt vmcnt(55)"); q.done = q.n - 55
            if reg: a(f"buffer_load_dwordx4 {vr(40 + (s-8)*32 + j*4, 4)}, v{30+j}, s[28:31], s41 offen")
            else: a(f"buffer_load_dwordx4 v{30+j}, s[28:31], s41 offen lds")
            if not loop: q.issue(("w", s) if j == 7 else None)
        a("s_mov_b32 s41, s46")
    q.wait(("a", 14)); a("s_barrier")
    for s in (0, 1, 2): issueW(s)
    q.wait(("a", 15)); a("s_barrier")
    for u in t2sched.get(16, []): touch2(u)
    for s in range(3, P.wpre): issueW(s)
    a("s_barrier")
    for u in t2sched.get(17, []): touch2(u)
    assert NR == 0
    q.wait(("w", 0))
    pf.stamp(4)
    a("s_barrier")
    pf.stamp(5)
    for s in range(max(3, P.wpre), 6): issueW(s)
    q.wait(("w", 1)); a("s_barrier")
    for s in (6, 7): issueW(s)
    for s in range(1, NR + 1):
        q.wait(("w", s + 1)); a("s_barrier")
        q.wait(("w", s + 7))
        for j in range(8):
            a(f"ds_write_b128 v{38 + ((s-1) >> 2)}, {vr(40 + (s-1)*32 + j*4, 4)} offset:{((s-1) & 3)*16384 + j*1024}")
    a(f"s_add_u32 s42, s42, {NR*16384}")
    a(f"s_mov_b32 s47, {NR + 1}")
    a("s_waitcnt lgkmcnt(0)")
    a.label("L_WLOOP")
    a("s_waitcnt vmcnt(40)"); a("s_barrier")
    issueW(0, True)
    a("s_add_u32 s42, s42, 16384"); a("s_and_b32 s42, s42, 0x1ffff")
    a("s_add_u32 s47, s47, 1"); a("s_cmp_lt_u32 s47, 21"); a("s_cbranch_scc1 L_WLOOP")
    for s in range(21, 27):
        a(f"s_waitcnt vmcnt({(26 - s) * 8})"); a("s_barrier")
    pf.dump(); a("s_endpgm")
    a.label("L_LOADA")
    a("v_lshrrev_b32 v3, 3, v2")
    a("v_and_b32 v4, 7, v2"); a("v_xor_b32 v4, v4, v3"); a("v_lshlrev_b32 v4, 4, v4")
    a("v_lshl_add_u32 v4, v3, 11, v4")
    a("s_lshl_b32 s44, s20, 18"); a("s_lshl_b32 s45, s40, 17"); a("s_add_u32 s44, s44, s45")
    a("v_add_u32 v8, s44, v4")
    for j in range(1, 8): a(f"v_add_u32 v{8+j}, {j*16384}, v8")
    a("s_lshl_b32 s41, s41, 7")
    a("s_lshl_b32 s42, s40, 13")
    a("s_waitcnt lgkmcnt(0)")
    srd(a, 24, 4, X_BYTES)
    q = VmQ(a)
    srd(a, 36, 16, 256)
    srd(a, 56, 18, WS_SZ)
    a("s_lshl_b32 s60, s20, 4"); a("s_add_u32 s61, s60, s21")
    a("s_lshl_b32 s62, s61, 10"); a(f"s_add_u32 s62, s62, {XFL}")
    a("v_lshlrev_b32 v40, 3, v2"); a("s_lshl_b32 s63, s40, 9"); a("s_add_u32 s63, s63, s62")
    a("v_mov_b32 v42, 0"); a("v_mov_b32 v43, 0"); a("v_mov_b32 v44, 1")
    a("buffer_store_dwordx2 v[42:43], v40, s[56:59], s63 offen sc1"); q.issue()
    a(f"v_mov_b32 v41, {CNT}"); a("ds_write_b32 v41, v42"); a("s_waitcnt lgkmcnt(0)")
    if P.warmh:
        a("s_mul_i32 s64, s20, 112"); a("s_mul_i32 s65, s21, 7"); a("s_add_u32 s64, s64, s65"); a("s_lshl_b32 s64, s64, 13")
        a("s_lshl_b32 s65, s40, 11"); a("s_add_u32 s64, s64, s65")
        a("v_lshlrev_b32 v45, 4, v2")
        for i in range(4): a(f"v_mov_b32 v{48+i}, -1")
        a("s_lshl_b32 s66, s61, 15"); a(f"s_add_u32 s66, s66, {XCH}"); a("s_add_u32 s66, s66, s65")
    def issueA(s):
        if P.warmh & 1 and s >= 2:
            for j in range(2):
                a(f"buffer_store_dwordx4 v[48:51], v45, s[56:59], s64 offen offset:{j*1024}{P.wsc}"); q.issue()
            a("s_add_u32 s64, s64, 4096")
        if P.warmh & 2 and 2 <= s < 10:
            for j in range(2):
                a(f"buffer_store_dwordx4 v[48:51], v45, s[56:59], s66 offen offset:{j*1024}{P.wsc}"); q.issue()
            a("s_add_u32 s66, s66, 4096")
        for j in range(8):
            a(f"s_add_u32 m0, s42, {((s + 2) % 3) * REG + j*1024}")
            if j == 0: a("s_add_u32 s46, s41, 128")
            elif j == 1: a("s_and_b32 s46, s46, 2047")
            else: a("s_nop 0")
            a(f"buffer_load_dwordx4 v{8+j}, s[24:27], s41 offen lds")
            q.issue(("a", s) if j == 7 else None)
        a("s_mov_b32 s41, s46")
    pf.stamp(2)
    issueA(0); issueA(1)
    pf.stamp(3)
    for i in range(17):
        if i < 16: q.wait(("a", i))
        a("s_barrier")
        if i + 2 < 16 and i != 0 or i == 0: pass
        nxt = i + 2
        if nxt < 16: issueA(nxt); st_rows(nxt)
    pf.stamp(4)
    a("s_cmp_eq_u32 s40, 1"); a("s_cbranch_scc1 L_AEND")
    a(f"s_mov_b32 s51, {SPIN if P.mark else 1}"); a("s_mov_b32 s52, " + ("16" if P.mark == 2 else "0x01010101"))
    a("v_lshlrev_b32 v3, 2, v2")
    a("s_mov_b64 exec, " + ("1" if P.mark == 2 else "15"))
    a.label("L_MARK")
    a("buffer_load_dword v6, v3, s[36:39], s60 offen sc1")
    a("s_sub_u32 s51, s51, 1")
    a("s_waitcnt vmcnt(0)")
    a(("v_cmp_gt_u32" if P.mark == 2 else "v_cmp_ne_u32") + " vcc, s52, v6")
    a("s_cbranch_vccz L_MARKD")
    a("s_cmp_lg_u32 s51, 0"); a("s_cbranch_scc1 L_MARK")
    a.label("L_MARKD")
    a("s_mov_b64 exec, 0xffff")
    a("s_and_b32 s47, s21, 7"); a("v_sub_u32 v5, s47, v2"); a("v_and_b32 v5, 7, v5"); a("v_lshlrev_b32 v5, 2, v5"); a("v_lshl_add_u32 v5, v2, 10, v5")
    a("s_and_b32 s46, s61, 0xf8"); a("s_lshl_b32 s46, s46, 10"); a(f"s_add_u32 s46, s46, {XFL}")
    a("s_mov_b32 s48, 0")
    a("s_barrier")
    pf.stamp(5)
    np_ = [0]
    def poll(j):
        n = np_[0]; np_[0] += 1
        a(f"s_mov_b32 s51, {SPIN}")
        a.label(f"L_POLL{n}")
        a(f"s_bitcmp1_b32 s48, {j}"); a(f"s_cbranch_scc1 L_POLLD{n}")
        a("buffer_load_dword v6, v3, s[56:59], s62 offen sc1")
        a("s_sub_u32 s51, s51, 1")
        a("s_waitcnt vmcnt(0)")
        a("v_cmp_eq_u32 vcc, 1, v6")
        a("s_mov_b32 s48, vcc_lo")
        a("s_cmp_lg_u32 s51, 0"); a(f"s_cbranch_scc1 L_POLL{n}")
        a.label(f"L_POLLD{n}")
    iss = {}
    for v in range(7, U): iss[v] = max(v - PD, P.l1 - 1)
    have = []
    for s in range(27):
        lim = 2*s + 1 if 2*s + 3 < 8 else 2*s + 2
        for v in range(7, U):
            if iss[v] <= lim and fbit(v) not in have:
                if fbit(v) > 8: assert 2*s + 1 > PS
                have.append(fbit(v)); poll(fbit(v))
                if len(have) == 1: pf.stamp(6)
        if len(have) == 14 and not P.prof: break
        a("s_barrier")
    a.label("L_AEND")
    a("s_waitcnt vmcnt(0) lgkmcnt(0)")
    pf.dump(); a("s_endpgm")
    a.label("L_COMP")
    ACC = 128; XF = [32, 76]; WF = [48, 92]
    if P.pfi:
        a("s_getpc_b64 s[56:57]")
        a.label("L_PC")
        a(f"s_sub_u32 s56, s56, L_PC-{KN}"); a("s_subb_u32 s57, s57, 0")
        a("s_lshl_b32 s58, s23, 10"); a("s_lshl_b32 s59, s3, 8"); a("s_add_u32 s58, s58, s59")
        for c in range(P.pfi):
            a(f"s_min_u32 s59, s58, L_END-{KN}-192")
            a("s_add_u32 s68, s56, s59"); a("s_addc_u32 s69, s57, 0")
            for j in range(4): a(f"s_load_dword s96, s[68:69], {j*64}")
            a("s_add_u32 s58, s58, 32768")
    a("s_and_b32 s40, s3, 1"); a("s_lshr_b32 s41, s3, 1")
    a("v_and_b32 v12, 15, v2"); a("v_lshrrev_b32 v13, 4, v2")
    a("s_mul_i32 s42, s21, 448"); a("s_lshl_b32 s43, s41, 5"); a("s_add_u32 s43, s43, s42")
    a("s_lshl_b32 s44, s41, 6"); a("s_add_u32 s42, s42, s44")
    a("v_lshlrev_b32 v14, 3, v13")
    a("s_lshl_b32 s62, s20, 4"); a("s_add_u32 s62, s62, s21"); a("s_lshl_b32 s62, s62, 2"); a("s_add_u32 s62, s62, s3")
    a("s_lshr_b32 s63, s62, 2"); a("s_lshl_b32 s63, s63, 3"); a("s_add_u32 s63, s63, s3"); a("s_lshl_b32 s63, s63, 7"); a(f"s_add_u32 s63, s63, {XFL + 128}")
    a("s_waitcnt lgkmcnt(0)")
    srd(a, 28, 8, F * 2)
    for nt in range(7):
        a(f"buffer_load_dwordx2 {vr(XF[1] + nt*2, 2)}, v14, s[28:31], {'s42' if nt < 6 else 's43'} offen offset:{64 + (nt>>1)*128 + (nt&1)*32 if nt < 6 else 0}")
    srd(a, 32, 18, WS_SZ)
    a("v_and_b32 v15, 7, v12"); a("v_xor_b32 v15, v15, v13"); a("v_lshlrev_b32 v15, 4, v15"); a("v_lshl_add_u32 v15, v12, 7, v15")
    a("s_lshl_b32 s43, s40, 13"); a(f"s_add_u32 s43, s43, {2*REG}")
    a("v_add_u32 v4, s43, v15"); a("v_xor_b32 v5, 64, v4")
    a("v_lshlrev_b32 v15, 12, v13")
    a("v_bfe_u32 v16, v2, 2, 2"); a("v_lshl_add_u32 v15, v16, 6, v15")
    a("v_and_b32 v16, 3, v2"); a("v_lshl_add_u32 v15, v16, 3, v15")
    a("v_and_b32 v16, 1, v13"); a("v_lshl_add_u32 v15, v16, 5, v15")
    a("s_lshl_b32 s44, s41, 8"); a(f"s_add_u32 s44, s44, {2*REG + 16384}")
    a("v_add_u32 v6, s44, v15"); a("v_xor_b32 v7, 32, v6")
    a("s_lshl_b32 s44, s41, 5"); a("v_xor_b32 v15, s44, v15"); a(f"v_add_u32 v8, {2*REG + 16384}, v15")
    table(25, 26, 13)
    a("s_lshr_b32 s45, s21, 3"); a("s_mul_i32 s44, s20, 112"); a("s_mul_i32 s45, s45, 56"); a("s_add_u32 s44, s44, s45"); a("s_lshl_b32 s44, s44, 13")
    a("v_add_u32 v25, s44, v25")
    a(f"s_mov_b32 s61, {2*REG}"); a("s_mov_b32 s60, 0")
    a("s_waitcnt vmcnt(0)")
    for nt in range(7):
        b = XF[1] + nt*2; t = ACC + nt*16
        a(f"v_lshlrev_b32 v{t}, 16, v{b}"); a(f"v_and_b32 v{t+1}, 0xffff0000, v{b}")
        a(f"v_lshlrev_b32 v{t+2}, 16, v{b+1}"); a(f"v_and_b32 v{t+3}, 0xffff0000, v{b+1}")
        for mt in range(1, 4):
            for r in (0, 2): a(f"v_pk_mov_b32 {vr(t+mt*4+r,2)}, {vr(t+r,2)}, {vr(t+r,2)} op_sel:[0,1]")
    def reads1(ks):
        out = []
        for mt in range(4):
            out.append(f"ds_read_b128 {vr(XF[ks] + mt*4, 4)}, v{4+ks} offset:{mt*2048}")
        for nt in range(7):
            for hf in range(2):
                out.append(f"ds_read_b64_tr_b16 {vr(WF[ks] + nt*4 + hf*2, 2)}, v{8 if nt == 6 else 6 + (nt&1)} offset:{(8*ks+hf)*2048 + (256 + (nt>>1)*512 if nt < 6 else 0)}")
        return out
    srd(a, 36, 16, 256)
    a("v_mov_b32 v18, 1"); a("v_mov_b32 v19, 0"); a("s_lshr_b32 s67, s62, 2")
    a("s_barrier")
    pf.st2(2,0)
    for r in reads1(0): a(r)
    a("s_cmp_lg_u32 s3, 0"); a("s_cbranch_scc1 L_LOOP1")
    if P.mark == 1: a("s_mov_b64 exec, 1"); a("buffer_store_byte v18, v19, s[36:39], s67 offen sc1"); a("s_mov_b64 exec, -1")
    if P.mark == 2: a("s_mov_b64 exec, 1"); a("s_lshl_b32 s68, s20, 4"); a("buffer_atomic_add v18, v19, s[36:39], s68 offen sc1"); a("s_mov_b64 exec, -1")
    a.label("L_LOOP1")
    for fs in [0, 1] * P.un1:
        a("s_waitcnt lgkmcnt(0)")
        if fs == 1: a("s_barrier")
        rd = reads1(1 - fs)
        if fs == 0:
            rd += [f"s_add_u32 s64, s61, {REG}", f"s_cmp_eq_u32 s64, {3*REG}", "s_cselect_b32 s64, 0, s64", "s_sub_u32 s65, s64, s61", "s_mov_b32 s61, s64",
                   "v_add_u32 v4, s65, v4", "v_add_u32 v6, s65, v6", "v_add_u32 v7, s65, v7", "v_add_u32 v8, s65, v8", "v_add_u32 v5, s65, v5"]
        else:
            rd += ["s_add_u32 s60, s60, 1", "s_cmp_lt_u32 s60, 16"]
        i = 0
        for nt in range(7):
            for mt in range(4):
                acc = vr(ACC + (nt*4+mt)*4, 4)
                a(f"v_mfma_f32_16x16x32_bf16 {acc}, {vr(WF[fs]+nt*4, 4)}, {vr(XF[fs]+mt*4, 4)}, {acc}")
                if i < len(rd): a(rd[i]); i += 1
        assert i == len(rd)
    a("s_cbranch_scc1 L_LOOP1")
    pf.st2(3,2)
    c0 = -2.0 * 0.7978845608028654 * 1.4426950408889634
    c1 = c0 * 0.044715
    a(f"s_mov_b32 s46, {f32(c1)}"); a(f"s_mov_b32 s47, {f32(c0)}")
    a("s_mul_i32 s48, s20, 112"); a("s_mul_i32 s49, s21, 7"); a("s_add_u32 s48, s48, s49")
    a("s_lshl_b32 s66, s48, 13")
    a("s_lshl_b32 s49, s40, 12"); a("s_add_u32 s48, s66, s49")
    a("v_lshlrev_b32 v14, 4, v2")
    a("s_lshl_b32 s49, s41, 3"); a("v_add_u32 v15, s49, v14")
    a("s_mov_b32 s50, s48")
    a("s_lshl_b32 s49, s41, 13"); a("s_add_u32 s51, s48, s49"); a("s_add_u32 s51, s51, 8192")
    a("s_add_u32 s52, s51, 16384"); a("s_add_u32 s53, s51, 32768")
    srd(a, 28, 12, D * 2)
    a("s_lshr_b32 s54, s21, 3"); a("s_lshl_b32 s54, s54, 7"); a("s_and_b32 s55, s21, 7"); a("s_lshl_b32 s55, s55, 8"); a("s_add_u32 s54, s54, s55")
    a("v_lshrrev_b32 v16, 5, v2"); a("v_lshlrev_b32 v16, 3, v16")
    a("s_waitcnt lgkmcnt(0)")
    for c in range(8):
        a(f"buffer_load_dwordx2 {vr(96 + c*2, 2)}, v16, s[28:31], s54 offen offset:{c*16}")
    a("s_lshl_b32 s49, s40, 12"); a(f"s_add_u32 s49, s49, {HB}"); a("v_add_u32 v21, s49, v15")
    a("s_lshl_b32 s55, s41, 13"); a("s_add_u32 s49, s49, s55"); a("v_add_u32 v20, s49, v14")
    TMP = 32
    def gelu4(t, dst, tmp):
        for h in range(2):
            x = vr(t + 2*h, 2); u = vr(tmp + 2*h, 2); a(f"v_pk_mul_f32 {u}, {x}, {x}")
        for h in range(2):
            u = vr(tmp + 2*h, 2); a(f"v_pk_fma_f32 {u}, {u}, s[46:47], s[46:47] op_sel:[0,0,1] op_sel_hi:[1,0,1]")
        for h in range(2):
            x = vr(t + 2*h, 2); u = vr(tmp + 2*h, 2); a(f"v_pk_mul_f32 {u}, {u}, {x}")
        for j in range(4): a(f"v_exp_f32 v{tmp+j}, v{tmp+j}")
        for h in range(2):
            u = vr(tmp + 2*h, 2); a(f"v_pk_add_f32 {u}, {u}, 1.0 op_sel_hi:[1,0]")
        for j in range(4): a(f"v_rcp_f32 v{tmp+j}, v{tmp+j}")
        for h in range(2):
            x = vr(t + 2*h, 2); u = vr(tmp + 2*h, 2); a(f"v_pk_mul_f32 {u}, {u}, {x}")
        for h in range(2):
            a(f"v_cvt_pk_bf16_f32 v{dst+h}, v{tmp+2*h}, v{tmp+2*h+1}")
    k = 0
    for mt in range(4):
        dst = 64 + (k % 8) * 4; k += 1
        gelu4(ACC + (6*4+mt)*4, dst, TMP)
        a(f"buffer_store_dwordx2 {vr(dst,2)}, v15, s[32:35], s50 offen offset:{mt*1024} sc1")
        a(f"ds_write_b64 v21, {vr(dst,2)} offset:{mt*1024}")
    for pi in range(3):
        for mt in range(4):
            dst = 64 + (k % 8) * 4; k += 1
            gelu4(ACC + (2*pi*4+mt)*4, dst, TMP)
            gelu4(ACC + ((2*pi+1)*4+mt)*4, dst + 2, TMP + 4)
            a(f"buffer_store_dwordx4 {vr(dst,4)}, v14, s[32:35], s{51+pi} offen offset:{mt*1024} sc1")
            a(f"ds_write_b128 v20, {vr(dst,4)} offset:{8192 + pi*16384 + mt*1024}")
    pf.st2(0,3)
    A2 = 32; W2 = [96, 128]; HF = 160
    a("s_lshr_b32 s40, s21, 3")
    a("s_and_b32 s41, s21, 7")
    a("v_and_b32 v15, 1, v13"); a("v_lshrrev_b32 v17, 1, v13")
    a("s_lshl_b32 s42, s3, 11")
    a("v_lshlrev_b32 v16, 4, v12"); a("v_lshl_add_u32 v16, v15, 10, v16"); a("v_lshl_add_u32 v16, v17, 8, v16"); a("v_add_u32 v16, s42, v16")
    for v in range(7, 15): a(f"v_readlane_b32 s{88 + v - 7}, v25, {v}")
    a("v_readlane_b32 s66, v25, 15"); a("s_mov_b32 s45, 15")
    a("v_lshrrev_b32 v3, 2, v12")
    a("v_lshl_add_u32 v4, v17, 2, v3"); a("v_lshlrev_b32 v4, 8, v4")
    a("v_lshl_add_u32 v3, v3, 1, v15"); a("v_lshl_add_u32 v4, v3, 5, v4")
    a("v_and_b32 v3, 3, v2"); a("v_lshl_add_u32 v4, v3, 3, v4")
    a("s_lshl_b32 s43, s40, 7"); a("v_xor_b32 v4, s43, v4")
    for t in range(1, 4): a(f"v_xor_b32 v{4+t}, {t*64}, v4")
    a("v_sub_u32 v19, s41, v2"); a("v_and_b32 v19, 7, v19"); a("v_lshlrev_b32 v19, 2, v19"); a("v_lshl_add_u32 v19, v2, 10, v19")
    a("s_and_b32 s46, s67, 0xf8"); a("s_lshl_b32 s46, s46, 10"); a(f"s_add_u32 s46, s46, {XFL}")
    a("s_waitcnt vmcnt(16)")
    for c in range(8):
        t = A2 + c*4; b = 96 + c*2
        a(f"v_lshlrev_b32 v{t}, 16, v{b}"); a(f"v_and_b32 v{t+1}, 0xffff0000, v{b}")
        a(f"v_lshlrev_b32 v{t+2}, 16, v{b+1}"); a(f"v_and_b32 v{t+3}, 0xffff0000, v{b+1}")
    a(f"v_add_u32 v22, {HB}, v16"); a(f"v_mov_b32 v23, {CNT}")
    a("s_cmp_lg_u32 s3, 0")
    a("s_waitcnt vmcnt(8) lgkmcnt(0)")
    a("s_barrier")
    a("s_cbranch_scc1 L_NOPUBA")
    a("s_mov_b64 exec, 255"); a("buffer_store_dword v18, v19, s[32:35], s46 offen sc1"); a("s_mov_b64 exec, -1")
    a.label("L_NOPUBA")
    pf.st2(4,0)
    q = VmQ(a)
    q.issue("st")
    def publish():
        q.wait("st")
        a("s_mov_b64 exec, 1"); a("ds_add_rtn_u32 v24, v23, v18"); a("s_mov_b64 exec, 255")
        a("s_waitcnt lgkmcnt(0)")
        a("v_readfirstlane_b32 s47, v24")
        a("s_cmp_lg_u32 s47, 3"); a("s_cbranch_scc1 L_NOPUB")
        a("buffer_store_dword v18, v19, s[32:35], s46 offen offset:32 sc1")
        a.label("L_NOPUB")
        a("s_mov_b64 exec, -1")
    def hload(v, part=3):
        so = f"s{88 + v - 7}" if v < 15 else "s66"
        if part & 1:
            a(f"buffer_load_dwordx4 {vr(HF + (v % PD)*8, 4)}, v16, s[32:35], {so} offen{P.hsc}")
            q.issue()
        if part & 2:
            a(f"buffer_load_dwordx4 {vr(HF + (v % PD)*8 + 4, 4)}, v16, s[32:35], {so} offen offset:512{P.hsc}")
            q.issue(("h", v))
            if 15 <= v < 55: a("s_add_u32 s45, s45, 1"); a("v_readlane_b32 s66, v25, s45")
    def order(u):
        if u == U - 1: return [(0, 2), (0, 3), (1, 2), (1, 3), (0, 0), (0, 1), (1, 0), (1, 1)]
        return [(kk, t) for kk in range(2) for t in range(4)]
    def reads2(u):
        out = []
        base = ((u >> 1) & 3) * 16384 + (u & 1) * 8192
        for kk, t in order(u):
            for hf in range(2):
                r = f"ds_read_b64_tr_b16 {vr(W2[u & 1] + (kk*4+t)*4 + hf*2, 2)}, v{4+t} offset:{base + kk*2048 + hf*4096}"
                if u % 8 == 0 and u > 0 and hf == 0 and kk == 0: r = f"v_xor_b32 v{4+t}, 0x10000, v{4+t}\n    " + r
                out.append(r)
        return out
    for v in range(7):
        for kk in range(2): a(f"ds_read_b128 {vr(HF + v*8 + kk*4, 4)}, v22 offset:{v*8192 + kk*512}")
    for r in reads2(0): a(r)
    for i in range(32, 64, 2): a(f"v_pk_mov_b32 {vr(A2+i,2)}, 0, 0")
    srd(a, 36, 14, OUT_BYTES)
    def xsend(j):
        a(f"buffer_store_dwordx4 {vr(A2 + 32 + j*4, 4)}, v15, s[32:35], s{46 + j//4} offen offset:{(j%4)*1024} sc1")
    PAT = P.pat.split(",")
    assert len(PAT) == 8 and sum(int(ch) for g in PAT for ch in g if ch.isdigit()) == 16
    def step(u, first=False):
        bar = (u & 1) and u + 1 < U
        if u == PS: publish()
        if bar and ("B" not in P.pat or u < 8): a("s_barrier"); bar = False
        rd = reads2(u + 1) if u + 1 < U else []
        i = 0
        hv = [v for v in range(7, U) if iss[v] == u - 1]
        spread = len(hv) == 1 and u >= 8
        if hv and not spread:
            for v in hv: hload(v)
        if u >= 7: q.wait(("h", u))
        last = None
        for m, (kk, t) in enumerate(order(u)):
            cnt = min(15, 16 - 2*(m+1) + i)
            if last is None or cnt < last: a(f"s_waitcnt lgkmcnt({cnt})"); last = cnt
            acc = vr(A2 + t*16, 16)
            a(f"v_mfma_f32_32x32x16_bf16 {acc}, {vr(W2[u&1]+(kk*4+t)*4, 4)}, {vr(HF + (u % PD)*8 + kk*4, 4)}, {acc}")
            for ch in PAT[m]:
                if ch.isdigit():
                    assert not bar
                    for _ in range(int(ch)):
                        if i < len(rd):
                            if not (P.nord and u >= 8 and (P.nord == 1 or i & 1)): a(rd[i])
                            i += 1; last += 1
                elif ch == "B":
                    if bar: a("s_barrier"); bar = False
                elif ch == "a":
                    if spread: hload(hv[0], 1)
                elif ch == "b":
                    if spread: hload(hv[0], 2)
            if u == U - 1 and m >= 5:
                if m == 5: a("s_nop 5")
                for j in {5: (0, 1, 2), 6: (3, 4, 5), 7: (6, 7)}[m]: xsend(j)
        assert not bar
    for u in range(8): step(u)
    pf.st2(5,0,2)
    a("s_mov_b32 s60, 0")
    a.label("L_LOOP2")
    for u in range(8, 16): step(u)
    if P.prof == 3:
        for k, ix in ((0, 3), (2, 4), (3, 5)):
            a(f"s_cmp_eq_u32 s60, {k}"); a(f"s_cbranch_scc0 L_PSK{k}"); pf.st2(0, 0, ix); a.label(f"L_PSK{k}")
    a("s_add_u32 s60, s60, 1"); a("s_cmp_lt_u32 s60, 5"); a("s_cbranch_scc1 L_LOOP2")
    for v in range(16, 24):
        if ("h", v) in q.tags: q.tags[("h", v + 32)] = q.tags[("h", v)]
    a("v_lshlrev_b32 v15, 4, v2")
    a("s_lshl_b32 s46, s62, 13"); a(f"s_add_u32 s46, s46, {XCH}"); a("s_add_u32 s47, s46, 4096")
    a("s_xor_b32 s48, s46, %d" % (8*4*8192)); a("s_add_u32 s49, s48, 4096")
    a("s_xor_b32 s50, s63, 8192")
    a("v_mov_b32 v3, 0"); a("v_mov_b32 v18, 1")
    seq = [(48, kk, t) for kk in range(2) for t in (2, 3, 0, 1)] if False else [(48, kk, t) for kk in range(2) for t in range(4)]
    seq += [(u, kk, t) for u in range(49, 56) for kk in range(2) for t in (2, 3)]
    nsend = len(seq)
    seq += [(u, kk, t) for u in range(49, 56) for kk in range(2) for t in (0, 1)]
    stage_ok = 24
    pend = []
    TP = [0, 3, 3, 2, 0, 3, 3, 2]
    flagged = False
    for g in range(8):
        grp = seq[g*8:(g+1)*8]; nxtg = seq[(g+1)*8:(g+2)*8]
        rd = []
        for m, (u, kk, t) in enumerate(nxtg):
            base = ((u >> 1) & 3) * 16384 + (u & 1) * 8192
            for hf in range(2):
                rd.append((u >> 1, f"ds_read_b64_tr_b16 {vr(W2[(g+1) & 1] + m*4 + hf*2, 2)}, v{4+t} offset:{base + kk*2048 + hf*4096}"))
        i = 0; last = None
        for m, (u, kk, t) in enumerate(grp):
            n = g*8 + m
            if n == 64 - P.fl:
                assert not pend
                a("s_waitcnt vmcnt(0)"); pf.st2(0,5)
                a("buffer_store_dword v18, v3, s[32:35], s50 offen sc1"); flagged = True
            q.wait(("h", u))
            cnt = min(15, 16 - 2*(m+1) + i)
            if last is None or cnt < last: a(f"s_waitcnt lgkmcnt({cnt})"); last = cnt
            acc = vr(A2 + t*16, 16)
            a(f"v_mfma_f32_32x32x16_bf16 {acc}, {vr(W2[g&1]+m*4, 4)}, {vr(HF + (u % PD)*8 + kk*4, 4)}, {acc}")
            if g == 0 and m == 0: hload(55, 1)
            if g == 0 and m == 4: hload(55, 2)
            if n == nsend + 2: pend = list(range(8)); a("s_nop 3")
            if pend:
                for _ in range(2 if TP[m] == 0 else 1):
                    if pend: xsend(pend.pop(0)); q.issue()
            nx = [st for st, _ in rd[i:i + TP[m] + (TP[m+1] if TP[m] == 0 else 0)]]
            while nx and max(nx) > stage_ok: a("s_barrier"); stage_ok += 1
            for _ in range(TP[m]):
                if i < len(rd): a(rd[i][1]); i += 1; last += 1
        assert i == len(rd)
    assert stage_ok == 27 and not pend
    pf.st2(6,4,6)
    a("s_lshl_b32 s42, s20, 7"); a("s_lshl_b32 s43, s3, 5"); a("s_add_u32 s42, s42, s43")
    a("s_lshl_b32 s42, s42, 11"); a("s_add_u32 s42, s42, s54")
    if P.otr:
        a("v_and_b32 v16, 31, v2"); a("v_and_b32 v24, 7, v2"); a("v_xor_b32 v24, v24, v17"); a("v_lshlrev_b32 v24, 4, v24"); a("v_lshl_add_u32 v24, v16, 7, v24")
        a("s_lshl_b32 s43, s3, 12"); a("s_add_u32 s43, s43, 131072"); a("v_add_u32 v20, s43, v24")
        for g in range(1, 4): a(f"v_xor_b32 v{20+g}, {g*32}, v20")
        a("v_add_u32 v24, s43, v15")
        a("v_lshrrev_b32 v16, 3, v2"); a("v_and_b32 v19, 7, v2"); a("v_xor_b32 v19, v19, v16"); a("v_lshlrev_b32 v19, 4, v19"); a("v_lshl_add_u32 v16, v16, 11, v19")
        for g in range(1, 4): a(f"s_add_u32 s{42+g}, s42, {g*8*2048}")
    else:
        a("v_and_b32 v16, 31, v2"); a("v_lshlrev_b32 v16, 11, v16"); a("v_lshl_add_u32 v16, v17, 4, v16")
    if not flagged:
        a("s_waitcnt vmcnt(0)")
        pf.st2(0,5)
        a("buffer_store_dword v18, v3, s[32:35], s50 offen sc1")
    a(f"s_mov_b32 s51, {SPIN}")
    a.label("L_XPOLL")
    a("buffer_load_dword v19, v3, s[32:35], s63 offen sc1")
    a("s_sub_u32 s51, s51, 1")
    a("s_waitcnt vmcnt(0)")
    a("v_readfirstlane_b32 s52, v19")
    a("s_cmp_eq_u32 s52, 1"); a("s_cbranch_scc1 L_XDONE")
    a("s_cmp_lg_u32 s51, 0"); a("s_cbranch_scc1 L_XPOLL")
    a.label("L_XDONE")
    pf.st2(0,6)
    for nt in range(8):
        a(f"buffer_load_dwordx4 {vr(HF + nt*4, 4)}, v15, s[32:35], s{48 + nt//4} offen offset:{(nt%4)*1024} sc1")
    for g in range(4):
        t = A2 + g*8; p = HF + g*8
        a(f"s_waitcnt vmcnt({6 - 2*g if P.otr else 6 - g})")
        for r in (0, 2, 4, 6): a(f"v_pk_add_f32 {vr(t+r,2)}, {vr(t+r,2)}, {vr(p+r,2)}")
        for r in range(4): a(f"v_cvt_pk_bf16_f32 v{p+r}, v{t+2*r}, v{t+2*r+1}")
        a("s_nop 1")
        a(f"v_permlane32_swap_b32 v{p}, v{p+2}"); a(f"v_permlane32_swap_b32 v{p+1}, v{p+3}")
        if P.otr: a(f"ds_write_b128 v{20+g}, {vr(p,4)}")
        else: a(f"buffer_store_dwordx4 {vr(p,4)}, v16, s[36:39], s42 offen offset:{g*32}{P.osc}")
    if P.otr:
        a("s_waitcnt lgkmcnt(0)")
        for g in range(4): a(f"ds_read_b128 {vr(HF + g*4, 4)}, v24 offset:{g*1024}")
        for g in range(4):
            a(f"s_waitcnt lgkmcnt({3-g})")
            a(f"buffer_store_dwordx4 {vr(HF + g*4, 4)}, v16, s[36:39], s{42 + g} offen{P.osc}")
    pf.dump()
    a.label("L_END")
    a("s_endpgm")
    return dict(vgpr=240, lds=163840, block=512)

def main():
    ap = argparse.ArgumentParser()
    ap.add_argument("-o", default="f.s")
    ap.add_argument("--rot1", type=int, default=3)
    ap.add_argument("--t1", default="")
    ap.add_argument("--t2", default="14:0,14:1,15:2,15:3")
    ap.add_argument("--t2split", type=int, default=1)
    ap.add_argument("--l1", type=int, default=3)
    ap.add_argument("--un1", type=int, default=2)
    ap.add_argument("--mark", type=int, default=2)
    ap.add_argument("--nr", type=int, default=0)
    ap.add_argument("--prof", type=int, default=0)
    ap.add_argument("--noh", type=int, default=0)
    ap.add_argument("--otr", type=int, default=0)
    ap.add_argument("--osc", default="")
    ap.add_argument("--wpre", type=int, default=6)
    ap.add_argument("--fl", type=int, default=8)
    ap.add_argument("--st", default="")
    ap.add_argument("--sts", type=int, default=128)
    ap.add_argument("--pfi", type=int, default=1)
    ap.add_argument("--warmh", type=int, default=0)
    ap.add_argument("--wsc", default=" sc1")
    ap.add_argument("--ps", type=int, default=5)
    ap.add_argument("--scr", type=int, default=0)
    ap.add_argument("--pat", default="aB,3,3,2,b,3,3,2")
    ap.add_argument("--nord", type=int, default=0)
    ap.add_argument("--hpos", type=int, default=0)
    ap.add_argument("--hsc", default="sc1")
    P = ap.parse_args()
    if P.hsc: P.hsc = " " + P.hsc
    if P.osc: P.osc = " " + P.osc.replace("+", " ")
    a = Asm()
    k = gen(a, P)
    hdr = ["; fused MLP: out = gelu(x@w1+b1)@w2+b2 ; h handed between workgroups through d_ws with per-producer flags in d_debug",
           f"; @launch grid=(256,1,1) block=({k['block']},1,1) lds={k['lds']}",
           '.amdgcn_target "amdgcn-amd-amdhsa--gfx950"', ".text", f".globl {KN}"]
    tail = ['.section .rodata,"a"', ".p2align 6", f".amdhsa_kernel {KN}",
            f"  .amdhsa_next_free_vgpr {k['vgpr']}", "  .amdhsa_next_free_sgpr 102",
            f"  .amdhsa_accum_offset {k['vgpr']}", "  .amdhsa_group_segment_fixed_size 0",
            "  .amdhsa_kernarg_size 64", "  .amdhsa_user_sgpr_count 2",
            "  .amdhsa_user_sgpr_kernarg_segment_ptr 1", "  .amdhsa_system_sgpr_workgroup_id_x 1",
            ".end_amdhsa_kernel"]
    open(P.o, "w").write("\n".join(hdr) + "\n" + a.text() + "\n".join(tail) + "\n")

if __name__ == "__main__":
    main()
```

```python
import sys, argparse, struct
from gen import Asm, vr, sr, srd, VmQ, f32, S, D, F, X_BYTES, W1_BYTES, W2_BYTES, H_BYTES, OUT_BYTES

KN = "standalone__dense_activation_gelu__prompt_kernel"
WS_SZ = 64 << 20
XCH = 32 << 20
XFL = 48 << 20
PROF_BASE = 64 << 20

class Prof:
    def __init__(self, a, on):
        self.a = a; self.on = on
    def st2(self, i1, i2, i3=0):
        i = i1 if self.on == 1 else i2 if self.on == 2 else i3
        if self.on and i: self.a(f"s_memtime s[{70+2*i}:{71+2*i}]")
    def stamp(self, i):
        if self.on: self.a(f"s_memtime s[{70+2*i}:{71+2*i}]")
    def rt(self, i):
        if self.on: self.a(f"s_memrealtime s[{70+2*i}:{71+2*i}]")
    def dump(self):
        if not self.on: return
        a = self.a
        a("s_mov_b64 exec, -1")
        a("s_waitcnt vmcnt(0)")
        a("s_memtime s[84:85]"); a("s_memrealtime s[86:87]")
        a("s_waitcnt lgkmcnt(0)")
        a("s_mov_b32 s92, s18"); a("s_and_b32 s93, s19, 0xffff"); a("s_mov_b32 s94, 0x10000000"); a("s_mov_b32 s95, 0x20000")
        a("s_lshl_b32 s90, s2, 4"); a("s_add_u32 s90, s90, s3"); a("s_lshl_b32 s90, s90, 6")
        a(f"s_add_u32 s90, s90, {PROF_BASE}")
        a("v_mov_b32 v1, 0")
        for i in range(9):
            a(f"v_mov_b32 v0, s{70+2*i}")
            a(f"buffer_store_dword v0, v1, s[92:95], s90 offen offset:{4*i}")
        a("s_waitcnt vmcnt(0)")

def gen(a, P):
    REG = 49152
    NST1 = 16
    NST2 = 28; NB2 = 8; PD = 8; U = 56
    SPIN = 40000
    HB = 98304; CNT = 160000; PS = P.ps
    a.raw(".p2align 8"); a.raw(f".type {KN},@function"); a.label(KN)
    a("s_cmp_ge_u32 s2, 256"); a("s_cbranch_scc1 L_END")
    if P.scr: a("s_lshl_b32 s22, s2, 3"); a("s_lshr_b32 s2, s2, 5"); a("s_or_b32 s2, s2, s22"); a("s_and_b32 s2, s2, 255")
    pf = Prof(a, P.prof)
    pf.rt(0); pf.stamp(1)
    a("s_load_dwordx8 s[4:11], s[0:1], 0")
    a("s_load_dwordx8 s[12:19], s[0:1], 32")
    a("v_lshrrev_b32 v1, 6, v0"); a("v_and_b32 v2, 63, v0"); a("v_readfirstlane_b32 s3, v1")
    a("s_and_b32 s22, s2, 7"); a("s_lshr_b32 s23, s2, 3")
    a("s_and_b32 s20, s22, 1"); a("s_lshl_b32 s20, s20, 3"); a("s_and_b32 s21, s23, 7"); a("s_add_u32 s20, s20, s21")
    a("s_lshr_b32 s21, s22, 1"); a("s_lshl_b32 s21, s21, 2"); a("s_lshr_b32 s40, s23, 3"); a("s_add_u32 s21, s21, s40")
    a("s_cmp_lt_u32 s3, 4"); a("s_cbranch_scc1 L_COMP")
    if P.rot1 == 0: a("s_mov_b32 s41, 0")
    elif P.rot1 == 1: a("s_add_u32 s41, s20, s21"); a("s_and_b32 s41, s41, 15")
    else:
        a("s_lshr_b32 s41, s22, 1"); a("s_lshl_b32 s41, s41, 2"); a("s_lshl_b32 s42, s22, 3"); a("s_add_u32 s41, s41, s42")
        if P.rot1 == 3: a("s_add_u32 s42, s20, s21"); a("s_and_b32 s42, s42, 1"); a("s_lshl_b32 s42, s42, 1"); a("s_add_u32 s41, s41, s42")
        a("s_and_b32 s41, s41, 15")
    a("s_and_b32 s40, s3, 1")
    def table(dst, t0, sh):
        A, Q, J, Pp, B = [f"v{t0+i}" for i in range(5)]
        a(f"v_subrev_u32 {A}, 7, v2"); a(f"v_mul_u32_u24 {Q}, 43, {A}"); a(f"v_lshrrev_b32 {Q}, 7, {Q}")
        a(f"v_mul_u32_u24 {Pp}, 3, {Q}"); a(f"v_sub_u32 {Pp}, {A}, {Pp}")
        a(f"v_subrev_u32 {B}, 28, v2"); a(f"v_lshrrev_b32 {J}, 2, {B}"); a(f"v_and_b32 {B}, 3, {B}"); a(f"v_add_u32 {B}, 3, {B}")
        a("v_cmp_gt_u32 vcc, 28, v2")
        a(f"v_cndmask_b32 {J}, {J}, {Q}, vcc"); a(f"v_cndmask_b32 {Pp}, {B}, {Pp}, vcc"); a(f"v_add_u32 {J}, 1, {J}")
        a("v_cmp_gt_u32 vcc, 7, v2")
        a(f"v_cndmask_b32 {J}, {J}, 0, vcc"); a(f"v_cndmask_b32 {Pp}, {Pp}, v2, vcc")
        a(f"v_add_u32 {J}, s21, {J}"); a(f"v_and_b32 {J}, 7, {J}"); a(f"v_mul_u32_u24 {J}, 7, {J}"); a(f"v_add_u32 {J}, {J}, {Pp}")
        a(f"v_lshlrev_b32 v{dst}, {sh}, {J}")
    def fbit(v): return 1 + (v - 7) // 3 if v < 28 else 9 + (v - 28) // 4
    def st_setup():
        a("s_lshr_b32 s68, s22, 2"); a("s_mul_i32 s68, s68, 1792"); a("s_mul_i32 s69, s23, 28"); a("s_add_u32 s68, s68, s69")
        a("s_and_b32 s69, s22, 1"); a("s_mul_i32 s69, s69, 896"); a("s_add_u32 s68, s68, s69")
        a("s_and_b32 s69, s3, 3"); a("s_mul_i32 s69, s69, 7"); a("s_add_u32 s68, s68, s69"); a("s_lshl_b32 s68, s68, 11")
        a("s_bfe_u32 s69, s22, 0x10001"); a("s_lshl_b32 s69, s69, 10"); a("s_add_u32 s68, s68, s69")
        a("s_add_u32 s68, s10, s68"); a("s_addc_u32 s69, s11, 0")
    st_at = [int(x) for x in P.st.split(",")] if P.st else []
    def st_rows(i):
        if st_at and i == min(st_at): st_setup()
        for r, w in enumerate(st_at):
            if w == i:
                for j in range(0, 1024, P.sts): a(f"s_load_dword s96, s[68:69], {r*2048 + j}")
    a("s_cmp_gt_u32 s3, 5"); a("s_cbranch_scc1 L_LOADA")
    a("v_bfe_u32 v4, v2, 2, 2"); a("v_mul_u32_u24 v4, 7168, v4")
    a("v_lshrrev_b32 v3, 4, v2"); a("v_lshl_add_u32 v4, v3, 6, v4")
    a("v_and_b32 v5, 3, v2"); a("v_lshl_add_u32 v4, v5, 4, v4")
    a("s_mul_i32 s44, s21, 448"); a("s_lshl_b32 s45, s40, 8"); a("s_add_u32 s44, s44, s45")
    a("v_add_u32 v8, s44, v4"); a("v_xor_b32 v4, 32, v8")
    for j in range(1, 16): a(f"v_add_u32 v{8+j}, {j*28672}, " + ("v4" if j & 2 else "v8"))
    KS = 64 * 7168
    a(f"s_mul_i32 s41, s41, {KS}")
    a("s_lshl_b32 s42, s40, 10"); a(f"s_add_u32 s42, s42, 16384")
    a("s_lshl_b32 s45, s40, 4"); a("s_lshr_b32 s45, -1, s45"); a("s_mov_b32 exec_hi, s45")
    a("s_waitcnt lgkmcnt(0)")
    srd(a, 24, 6, W1_BYTES)
    q = VmQ(a)
    def sched(txt):
        d = {}
        if txt:
            for it in txt.split(","):
                w, u = it.split(":"); d.setdefault(int(w), []).append(int(u))
        return d
    tsched = sched(P.t1); t2sched = sched(P.t2)
    def touch_setup():
        a("s_cmp_eq_u32 s40, 0")
        a("s_cselect_b32 s32, s4, s6"); a("s_cselect_b32 s33, s5, s7"); a("s_and_b32 s33, s33, 0xffff")
        a(f"s_mov_b32 s34, {X_BYTES}"); a("s_cmp_eq_u32 s40, 1"); a(f"s_cselect_b32 s34, {W1_BYTES}, s34"); a("s_mov_b32 s35, 0x20000")
        a("s_movk_i32 s52, 256"); a(f"s_cselect_b32 s52, {128*7168}, s52")
        a("v_and_b32 v24, 7, v2"); a("v_lshlrev_b32 v24, 11, v24"); a("v_bfe_u32 v25, v2, 3, 1"); a("v_lshl_add_u32 v24, v25, 7, v24")
        a("s_lshl_b32 s50, s2, 14"); a("v_add_u32 v24, s50, v24")
        a("v_min_u32 v25, 27, v2"); a("v_lshlrev_b32 v25, 7, v25")
        a("s_lshr_b32 s50, s2, 1"); a("s_mul_i32 s50, s50, 7168"); a("s_and_b32 s51, s2, 1"); a("s_mul_i32 s51, s51, 3584"); a("s_add_u32 s50, s50, s51")
        a("v_add_u32 v25, s50, v25")
        a("s_cmp_eq_u32 s40, 0"); a("s_cselect_b64 vcc, -1, 0"); a("v_cndmask_b32 v24, v25, v24, vcc")
    def touch(u):
        a(f"s_mul_i32 s50, s52, {u}")
        a(f"buffer_load_dword v26, v24, s[32:35], s50 offen"); q.issue()
    def touch2_setup():
        a("v_bfe_u32 v27, v2, 3, 2"); a("v_and_b32 v25, 7, v2"); a("v_lshlrev_b32 v25, 7, v25"); a("v_lshl_add_u32 v27, v27, 11, v25")
        a("s_lshr_b32 s53, s22, 2"); a(f"s_mul_i32 s53, s53, 1792"); a("s_lshl_b32 s54, s23, 3"); a("s_add_u32 s53, s53, s54")
        a("s_lshl_b32 s54, s40, 2"); a("s_add_u32 s53, s53, s54")
        a("s_and_b32 s54, s22, 1"); a(f"s_mul_i32 s54, s54, 896"); a("s_add_u32 s53, s53, s54"); a("s_lshl_b32 s53, s53, 11")
        a("s_bfe_u32 s54, s22, 0x10001"); a("s_lshl_b32 s54, s54, 10"); a("s_add_u32 s53, s53, s54")
    def touch2(u):
        a(f"s_add_u32 s54, s53, {u*256*2048}")
        a(f"buffer_load_dword v26, v27, s[28:31], s54 offen"); q.issue()
    def issueB(s):
        for j in range(16):
            a(f"s_add_u32 m0, s42, {((s + 2) % 3) * REG + j*2048}")
            if j == 0: a(f"s_add_u32 s46, s41, {KS}")
            elif j == 1: a(f"s_cmp_eq_u32 s46, {16*KS}")
            else: a("s_nop 0")
            a(f"buffer_load_dwordx4 v{8+j}, s[24:27], s41 offen lds")
            q.issue(("a", s) if j == 15 else None)
            if j == 1: a("s_cselect_b32 s46, 0, s46")
        a("s_mov_b32 s41, s46")
    pf.stamp(2)
    for i in range(16):
        if i >= 2: q.wait(("a", i - 2)); a("s_barrier")
        issueB(i)
        if i == 0:
            srd(a, 28, 10, W2_BYTES)
            if tsched: touch_setup()
        if i == 2 and t2sched: touch2_setup()
        st_rows(i)
        for u in tsched.get(i, []): touch(u)
        for u in t2sched.get(i, []): touch2(u)
    pf.stamp(3)
    a("s_mov_b64 exec, -1")
    a("v_lshrrev_b32 v3, 4, v2")
    a("v_bfe_u32 v4, v2, 1, 3"); a("v_lshlrev_b32 v5, 1, v3"); a("v_xor_b32 v4, v4, v5"); a("v_lshlrev_b32 v4, 5, v4")
    a("v_and_b32 v5, 1, v2"); a("v_lshl_add_u32 v4, v5, 4, v4")
    a("v_lshl_add_u32 v4, v3, 11, v4")
    a("s_lshr_b32 s44, s21, 3"); a(f"s_mul_i32 s44, s44, {1792*2048}")
    a("s_and_b32 s45, s21, 7"); a("s_lshl_b32 s46, s45, 8"); a("s_add_u32 s44, s44, s46")
    a("v_add_u32 v30, s44, v4")
    for j in range(1, 8): a(f"v_add_u32 v{30+j}, {j*8192}, v30")
    a("s_mul_i32 s41, s45, 7"); a("s_add_u32 s41, s41, s40"); a("s_lshl_b32 s41, s41, 16")
    table(29, 40, 16); a("s_mov_b32 s49, s40")
    a("s_lshl_b32 s42, s40, 13")
    a("v_lshlrev_b32 v38, 4, v2"); a("v_add_u32 v38, s42, v38"); a("v_add_u32 v39, 0x10000, v38")
    NR = P.nr
    def issueW(s, loop=False):
        reg = (not loop) and 8 <= s < 8 + NR
        for j in range(8):
            if not reg: a(f"s_add_u32 m0, s42, {(0 if loop else (s % NB2) * 16384) + j*1024}")
            if j == 0: a("s_add_u32 s49, s49, 2")
            elif j == 1: a("v_readlane_b32 s46, v29, s49")
            elif not reg: a("s_nop 0")
            if not loop and q.n - q.done >= 63:
                a("s_waitcnt vmcnt(55)"); q.done = q.n - 55
            if reg: a(f"buffer_load_dwordx4 {vr(40 + (s-8)*32 + j*4, 4)}, v{30+j}, s[28:31], s41 offen")
            else: a(f"buffer_load_dwordx4 v{30+j}, s[28:31], s41 offen lds")
            if not loop: q.issue(("w", s) if j == 7 else None)
        a("s_mov_b32 s41, s46")
    q.wait(("a", 14)); a("s_barrier")
    for s in (0, 1, 2): issueW(s)
    q.wait(("a", 15)); a("s_barrier")
    for u in t2sched.get(16, []): touch2(u)
    for s in range(3, P.wpre): issueW(s)
    a("s_barrier")
    for u in t2sched.get(17, []): touch2(u)
    assert NR == 0
    q.wait(("w", 0))
    pf.stamp(4)
    a("s_barrier")
    pf.stamp(5)
    for s in range(max(3, P.wpre), 6): issueW(s)
    q.wait(("w", 1)); a("s_barrier")
    for s in (6, 7): issueW(s)
    for s in range(1, NR + 1):
        q.wait(("w", s + 1)); a("s_barrier")
        q.wait(("w", s + 7))
        for j in range(8):
            a(f"ds_write_b128 v{38 + ((s-1) >> 2)}, {vr(40 + (s-1)*32 + j*4, 4)} offset:{((s-1) & 3)*16384 + j*1024}")
    a(f"s_add_u32 s42, s42, {NR*16384}")
    a(f"s_mov_b32 s47, {NR + 1}")
    a("s_waitcnt lgkmcnt(0)")
    a.label("L_WLOOP")
    a("s_waitcnt vmcnt(40)"); a("s_barrier")
    issueW(0, True)
    a("s_add_u32 s42, s42, 16384"); a("s_and_b32 s42, s42, 0x1ffff")
    a("s_add_u32 s47, s47, 1"); a("s_cmp_lt_u32 s47, 21"); a("s_cbranch_scc1 L_WLOOP")
    for s in range(21, 27):
        a(f"s_waitcnt vmcnt({(26 - s) * 8})"); a("s_barrier")
    pf.dump(); a("s_endpgm")
    a.label("L_LOADA")
    a("v_lshrrev_b32 v3, 3, v2")
    a("v_and_b32 v4, 7, v2"); a("v_xor_b32 v4, v4, v3"); a("v_lshlrev_b32 v4, 4, v4")
    a("v_lshl_add_u32 v4, v3, 11, v4")
    a("s_lshl_b32 s44, s20, 18"); a("s_lshl_b32 s45, s40, 17"); a("s_add_u32 s44, s44, s45")
    a("v_add_u32 v8, s44, v4")
    for j in range(1, 8): a(f"v_add_u32 v{8+j}, {j*16384}, v8")
    a("s_lshl_b32 s41, s41, 7")
    a("s_lshl_b32 s42, s40, 13")
    a("s_waitcnt lgkmcnt(0)")
    srd(a, 24, 4, X_BYTES)
    q = VmQ(a)
    srd(a, 36, 16, 256)
    srd(a, 56, 18, WS_SZ)
    a("s_lshl_b32 s60, s20, 4"); a("s_add_u32 s61, s60, s21")
    a("s_lshl_b32 s62, s61, 10"); a(f"s_add_u32 s62, s62, {XFL}")
    a("v_lshlrev_b32 v40, 3, v2"); a("s_lshl_b32 s63, s40, 9"); a("s_add_u32 s63, s63, s62")
    a("v_mov_b32 v42, 0"); a("v_mov_b32 v43, 0"); a("v_mov_b32 v44, 1")
    a("buffer_store_dwordx2 v[42:43], v40, s[56:59], s63 offen sc1"); q.issue()
    a(f"v_mov_b32 v41, {CNT}"); a("ds_write_b32 v41, v42"); a("s_waitcnt lgkmcnt(0)")
    if P.warmh:
        a("s_mul_i32 s64, s20, 112"); a("s_mul_i32 s65, s21, 7"); a("s_add_u32 s64, s64, s65"); a("s_lshl_b32 s64, s64, 13")
        a("s_lshl_b32 s65, s40, 11"); a("s_add_u32 s64, s64, s65")
        a("v_lshlrev_b32 v45, 4, v2")
        for i in range(4): a(f"v_mov_b32 v{48+i}, -1")
        a("s_lshl_b32 s66, s61, 15"); a(f"s_add_u32 s66, s66, {XCH}"); a("s_add_u32 s66, s66, s65")
    def issueA(s):
        if P.warmh & 1 and s >= 2:
            for j in range(2):
                a(f"buffer_store_dwordx4 v[48:51], v45, s[56:59], s64 offen offset:{j*1024}{P.wsc}"); q.issue()
            a("s_add_u32 s64, s64, 4096")
        if P.warmh & 2 and 2 <= s < 10:
            for j in range(2):
                a(f"buffer_store_dwordx4 v[48:51], v45, s[56:59], s66 offen offset:{j*1024}{P.wsc}"); q.issue()
            a("s_add_u32 s66, s66, 4096")
        for j in range(8):
            a(f"s_add_u32 m0, s42, {((s + 2) % 3) * REG + j*1024}")
            if j == 0: a("s_add_u32 s46, s41, 128")
            elif j == 1: a("s_and_b32 s46, s46, 2047")
            else: a("s_nop 0")
            a(f"buffer_load_dwordx4 v{8+j}, s[24:27], s41 offen lds")
            q.issue(("a", s) if j == 7 else None)
        a("s_mov_b32 s41, s46")
    pf.stamp(2)
    issueA(0); issueA(1)
    pf.stamp(3)
    for i in range(17):
        if i < 16: q.wait(("a", i))
        a("s_barrier")
        if i + 2 < 16 and i != 0 or i == 0: pass
        nxt = i + 2
        if nxt < 16: issueA(nxt); st_rows(nxt)
    pf.stamp(4)
    a("s_cmp_eq_u32 s40, 1"); a("s_cbranch_scc1 L_AEND")
    a(f"s_mov_b32 s51, {SPIN if P.mark else 1}"); a("s_mov_b32 s52, " + ("16" if P.mark == 2 else "0x01010101"))
    a("v_lshlrev_b32 v3, 2, v2")
    a("s_mov_b64 exec, " + ("1" if P.mark == 2 else "15"))
    a.label("L_MARK")
    a("buffer_load_dword v6, v3, s[36:39], s60 offen sc1")
    a("s_sub_u32 s51, s51, 1")
    a("s_waitcnt vmcnt(0)")
    a(("v_cmp_gt_u32" if P.mark == 2 else "v_cmp_ne_u32") + " vcc, s52, v6")
    a("s_cbranch_vccz L_MARKD")
    a("s_cmp_lg_u32 s51, 0"); a("s_cbranch_scc1 L_MARK")
    a.label("L_MARKD")
    a("s_mov_b64 exec, 0xffff")
    a("s_and_b32 s47, s21, 7"); a("v_sub_u32 v5, s47, v2"); a("v_and_b32 v5, 7, v5"); a("v_lshlrev_b32 v5, 2, v5"); a("v_lshl_add_u32 v5, v2, 10, v5")
    a("s_and_b32 s46, s61, 0xf8"); a("s_lshl_b32 s46, s46, 10"); a(f"s_add_u32 s46, s46, {XFL}")
    a("s_mov_b32 s48, 0")
    a("s_barrier")
    pf.stamp(5)
    np_ = [0]
    def poll(j):
        n = np_[0]; np_[0] += 1
        a(f"s_mov_b32 s51, {SPIN}")
        a.label(f"L_POLL{n}")
        a(f"s_bitcmp1_b32 s48, {j}"); a(f"s_cbranch_scc1 L_POLLD{n}")
        a("buffer_load_dword v6, v3, s[56:59], s62 offen sc1")
        a("s_sub_u32 s51, s51, 1")
        a("s_waitcnt vmcnt(0)")
        a("v_cmp_eq_u32 vcc, 1, v6")
        a("s_mov_b32 s48, vcc_lo")
        a("s_cmp_lg_u32 s51, 0"); a(f"s_cbranch_scc1 L_POLL{n}")
        a.label(f"L_POLLD{n}")
    iss = {}
    for v in range(7, U): iss[v] = max(v - PD, P.l1 - 1)
    have = []
    for s in range(27):
        lim = 2*s + 1 if 2*s + 3 < 8 else 2*s + 2
        for v in range(7, U):
            if iss[v] <= lim and fbit(v) not in have:
                if fbit(v) > 8: assert 2*s + 1 > PS
                have.append(fbit(v)); poll(fbit(v))
                if len(have) == 1: pf.stamp(6)
        if len(have) == 14 and not P.prof: break
        a("s_barrier")
    a.label("L_AEND")
    a("s_waitcnt vmcnt(0) lgkmcnt(0)")
    pf.dump(); a("s_endpgm")
    a.label("L_COMP")
    ACC = 128; XF = [32, 76]; WF = [48, 92]
    if P.pfi:
        a("s_getpc_b64 s[56:57]")
        a.label("L_PC")
        a(f"s_sub_u32 s56, s56, L_PC-{KN}"); a("s_subb_u32 s57, s57, 0")
        a("s_lshl_b32 s58, s23, 10"); a("s_lshl_b32 s59, s3, 8"); a("s_add_u32 s58, s58, s59")
        for c in range(P.pfi):
            a(f"s_min_u32 s59, s58, L_END-{KN}-192")
            a("s_add_u32 s68, s56, s59"); a("s_addc_u32 s69, s57, 0")
            for j in range(4): a(f"s_load_dword s96, s[68:69], {j*64}")
            a("s_add_u32 s58, s58, 32768")
    a("s_and_b32 s40, s3, 1"); a("s_lshr_b32 s41, s3, 1")
    a("v_and_b32 v12, 15, v2"); a("v_lshrrev_b32 v13, 4, v2")
    a("s_mul_i32 s42, s21, 448"); a("s_lshl_b32 s43, s41, 4"); a("s_add_u32 s43, s43, s42")
    a("s_lshl_b32 s44, s41, 6"); a("s_add_u32 s42, s42, s44")
    a("v_lshlrev_b32 v14, 3, v13")
    a("v_and_b32 v17, 32, v2"); a("v_and_b32 v16, 8, v14"); a("v_or_b32 v17, v17, v16")
    a("s_lshl_b32 s62, s20, 4"); a("s_add_u32 s62, s62, s21"); a("s_lshl_b32 s62, s62, 2"); a("s_add_u32 s62, s62, s3")
    a("s_lshr_b32 s63, s62, 2"); a("s_lshl_b32 s63, s63, 3"); a("s_add_u32 s63, s63, s3"); a("s_lshl_b32 s63, s63, 7"); a(f"s_add_u32 s63, s63, {XFL + 128}")
    a("s_waitcnt lgkmcnt(0)")
    srd(a, 28, 8, F * 2)
    for nt in range(7):
        a(f"buffer_load_dwordx2 {vr(XF[1] + nt*2, 2)}, {'v14' if nt < 6 else 'v17'}, s[28:31], {'s42' if nt < 6 else 's43'} offen offset:{64 + (nt>>1)*128 + (nt&1)*32 if nt < 6 else 0}")
    srd(a, 32, 18, WS_SZ)
    a("v_and_b32 v15, 7, v12"); a("v_xor_b32 v15, v15, v13"); a("v_lshlrev_b32 v15, 4, v15"); a("v_lshl_add_u32 v15, v12, 7, v15")
    a("s_lshl_b32 s43, s40, 13"); a(f"s_add_u32 s43, s43, {2*REG}")
    a("v_add_u32 v4, s43, v15"); a("v_xor_b32 v5, 64, v4")
    a("v_lshlrev_b32 v15, 12, v13")
    a("v_bfe_u32 v16, v2, 2, 2"); a("v_lshl_add_u32 v15, v16, 6, v15")
    a("v_and_b32 v16, 3, v2"); a("v_lshl_add_u32 v15, v16, 3, v15")
    a("v_and_b32 v16, 1, v13"); a("v_lshl_add_u32 v15, v16, 5, v15")
    a("s_lshl_b32 s44, s41, 8"); a(f"s_add_u32 s44, s44, {2*REG + 16384}")
    a("v_add_u32 v6, s44, v15"); a("v_xor_b32 v7, 32, v6")
    a("v_and_b32 v16, 2, v2"); a("v_mul_u32_u24 v16, 24, v16"); a("v_xor_b32 v15, v16, v15")
    a("s_lshl_b32 s44, s41, 4"); a(f"s_add_u32 s44, s44, {2*REG + 16384}"); a("v_add_u32 v8, s44, v15")
    table(25, 26, 13)
    a("s_lshr_b32 s45, s21, 3"); a("s_mul_i32 s44, s20, 112"); a("s_mul_i32 s45, s45, 56"); a("s_add_u32 s44, s44, s45"); a("s_lshl_b32 s44, s44, 13")
    a("v_add_u32 v25, s44, v25")
    a(f"s_mov_b32 s61, {2*REG}"); a("s_mov_b32 s60, 0")
    a("s_waitcnt vmcnt(0)")
    for nt in range(7):
        b = XF[1] + nt*2; t = ACC + nt*16
        a(f"v_lshlrev_b32 v{t}, 16, v{b}"); a(f"v_and_b32 v{t+1}, 0xffff0000, v{b}")
        a(f"v_lshlrev_b32 v{t+2}, 16, v{b+1}"); a(f"v_and_b32 v{t+3}, 0xffff0000, v{b+1}")
        for mt in range(1, 4):
            for r in (0, 2): a(f"v_pk_mov_b32 {vr(t+mt*4+r,2)}, {vr(t+r,2)}, {vr(t+r,2)} op_sel:[0,1]")
    def reads1(ks):
        out = []
        for mt in range(4):
            out.append(f"ds_read_b128 {vr(XF[ks] + mt*4, 4)}, v{4+ks} offset:{mt*2048}")
        for nt in range(7):
            for hf in range(2):
                out.append(f"ds_read_b64_tr_b16 {vr(WF[ks] + nt*4 + hf*2, 2)}, v{8 if nt == 6 else 6 + (nt&1)} offset:{(8*ks+hf)*2048 + (256 + (nt>>1)*512 if nt < 6 else 0)}")
        return out
    srd(a, 36, 16, 256)
    a("v_mov_b32 v18, 1"); a("v_mov_b32 v19, 0"); a("s_lshr_b32 s67, s62, 2")
    a("s_barrier")
    pf.st2(2,0)
    for r in reads1(0): a(r)
    a("s_cmp_lg_u32 s3, 0"); a("s_cbranch_scc1 L_LOOP1")
    if P.mark == 1: a("s_mov_b64 exec, 1"); a("buffer_store_byte v18, v19, s[36:39], s67 offen sc1"); a("s_mov_b64 exec, -1")
    if P.mark == 2: a("s_mov_b64 exec, 1"); a("s_lshl_b32 s68, s20, 4"); a("buffer_atomic_add v18, v19, s[36:39], s68 offen sc1"); a("s_mov_b64 exec, -1")
    a.label("L_LOOP1")
    for fs in [0, 1] * P.un1:
        a("s_waitcnt lgkmcnt(0)")
        if fs == 1: a("s_barrier")
        rd = reads1(1 - fs)
        if fs == 0:
            rd += [f"s_add_u32 s64, s61, {REG}", f"s_cmp_eq_u32 s64, {3*REG}", "s_cselect_b32 s64, 0, s64", "s_sub_u32 s65, s64, s61", "s_mov_b32 s61, s64",
                   "v_add_u32 v4, s65, v4", "v_add_u32 v6, s65, v6", "v_add_u32 v7, s65, v7", "v_add_u32 v8, s65, v8", "v_add_u32 v5, s65, v5"]
        else:
            rd += ["s_add_u32 s60, s60, 1", "s_cmp_lt_u32 s60, 16"]
        i = 0
        for nt in range(7):
            for mt in range(4):
                acc = vr(ACC + (nt*4+mt)*4, 4)
                a(f"v_mfma_f32_16x16x32_bf16 {acc}, {vr(WF[fs]+nt*4, 4)}, {vr(XF[fs]+mt*4, 4)}, {acc}")
                if i < len(rd): a(rd[i]); i += 1
        assert i == len(rd)
    a("s_cbranch_scc1 L_LOOP1")
    pf.st2(3,2)
    c0 = -2.0 * 0.7978845608028654 * 1.4426950408889634
    c1 = c0 * 0.044715
    a(f"s_mov_b32 s46, {f32(c1)}"); a(f"s_mov_b32 s47, {f32(c0)}")
    a("s_mul_i32 s48, s20, 112"); a("s_mul_i32 s49, s21, 7"); a("s_add_u32 s48, s48, s49")
    a("s_lshl_b32 s66, s48, 13")
    a("s_lshl_b32 s49, s40, 12"); a("s_add_u32 s48, s66, s49")
    a("v_lshlrev_b32 v14, 4, v2")
    a("v_and_b32 v15, 32, v2"); a("v_lshl_add_u32 v15, v15, 4, v14"); a("s_lshl_b32 s49, s41, 9"); a("v_add_u32 v15, s49, v15")
    a("s_mov_b32 s50, s48")
    a("s_lshl_b32 s49, s41, 13"); a("s_add_u32 s51, s48, s49"); a("s_add_u32 s51, s51, 8192")
    a("s_add_u32 s52, s51, 16384"); a("s_add_u32 s53, s51, 32768")
    srd(a, 28, 12, D * 2)
    a("s_lshr_b32 s54, s21, 3"); a("s_lshl_b32 s54, s54, 7"); a("s_and_b32 s55, s21, 7"); a("s_lshl_b32 s55, s55, 8"); a("s_add_u32 s54, s54, s55")
    a("v_lshrrev_b32 v16, 5, v2"); a("v_lshlrev_b32 v16, 3, v16")
    a("s_waitcnt lgkmcnt(0)")
    for c in range(8):
        a(f"buffer_load_dwordx2 {vr(96 + c*2, 2)}, v16, s[28:31], s54 offen offset:{c*16}")
    a("s_lshl_b32 s49, s40, 12"); a(f"s_add_u32 s49, s49, {HB}"); a("v_add_u32 v21, s49, v15")
    a("s_lshl_b32 s55, s41, 13"); a("s_add_u32 s49, s49, s55"); a("v_add_u32 v20, s49, v14")
    TMP = 32
    def gelu4(t, dst, tmp):
        for h in range(2):
            x = vr(t + 2*h, 2); u = vr(tmp + 2*h, 2); a(f"v_pk_mul_f32 {u}, {x}, {x}")
        for h in range(2):
            u = vr(tmp + 2*h, 2); a(f"v_pk_fma_f32 {u}, {u}, s[46:47], s[46:47] op_sel:[0,0,1] op_sel_hi:[1,0,1]")
        for h in range(2):
            x = vr(t + 2*h, 2); u = vr(tmp + 2*h, 2); a(f"v_pk_mul_f32 {u}, {u}, {x}")
        for j in range(4): a(f"v_exp_f32 v{tmp+j}, v{tmp+j}")
        for h in range(2):
            u = vr(tmp + 2*h, 2); a(f"v_pk_add_f32 {u}, {u}, 1.0 op_sel_hi:[1,0]")
        for j in range(4): a(f"v_rcp_f32 v{tmp+j}, v{tmp+j}")
        for h in range(2):
            x = vr(t + 2*h, 2); u = vr(tmp + 2*h, 2); a(f"v_pk_mul_f32 {u}, {u}, {x}")
        for h in range(2):
            a(f"v_cvt_pk_bf16_f32 v{dst+h}, v{tmp+2*h}, v{tmp+2*h+1}")
    k = 0
    for i2 in range(2):
        dst = 64 + (k % 8) * 4; k += 1
        gelu4(ACC + (6*4+2*i2)*4, dst, TMP)
        gelu4(ACC + (6*4+2*i2+1)*4, dst + 2, TMP + 4)
        a("s_nop 1")
        a(f"v_permlane32_swap_b32 v{dst}, v{dst+2}"); a(f"v_permlane32_swap_b32 v{dst+1}, v{dst+3}")
        a(f"buffer_store_dwordx4 {vr(dst,4)}, v15, s[32:35], s50 offen offset:{i2*2048} sc1")
        a(f"ds_write_b128 v21, {vr(dst,4)} offset:{i2*2048}")
    for pi in range(3):
        for mt in range(4):
            dst = 64 + (k % 8) * 4; k += 1
            gelu4(ACC + (2*pi*4+mt)*4, dst, TMP)
            gelu4(ACC + ((2*pi+1)*4+mt)*4, dst + 2, TMP + 4)
            a(f"buffer_store_dwordx4 {vr(dst,4)}, v14, s[32:35], s{51+pi} offen offset:{mt*1024} sc1")
            a(f"ds_write_b128 v20, {vr(dst,4)} offset:{8192 + pi*16384 + mt*1024}")
    pf.st2(0,3)
    A2 = 32; W2 = [96, 128]; HF = 160
    a("s_lshr_b32 s40, s21, 3")
    a("s_and_b32 s41, s21, 7")
    a("v_and_b32 v15, 1, v13"); a("v_lshrrev_b32 v17, 1, v13")
    a("s_lshl_b32 s42, s3, 11")
    a("v_lshlrev_b32 v16, 4, v12"); a("v_lshl_add_u32 v16, v15, 10, v16"); a("v_lshl_add_u32 v16, v17, 8, v16"); a("v_add_u32 v16, s42, v16")
    for v in range(7, 15): a(f"v_readlane_b32 s{88 + v - 7}, v25, {v}")
    a("v_readlane_b32 s66, v25, 15"); a("s_mov_b32 s45, 15")
    a("v_lshrrev_b32 v3, 2, v12")
    a("v_lshl_add_u32 v4, v17, 2, v3"); a("v_lshlrev_b32 v4, 8, v4")
    a("v_lshl_add_u32 v3, v3, 1, v15"); a("v_lshl_add_u32 v4, v3, 5, v4")
    a("v_and_b32 v3, 3, v2"); a("v_lshl_add_u32 v4, v3, 3, v4")
    a("s_lshl_b32 s43, s40, 7"); a("v_xor_b32 v4, s43, v4")
    for t in range(1, 4): a(f"v_xor_b32 v{4+t}, {t*64}, v4")
    a("v_sub_u32 v19, s41, v2"); a("v_and_b32 v19, 7, v19"); a("v_lshlrev_b32 v19, 2, v19"); a("v_lshl_add_u32 v19, v2, 10, v19")
    a("s_and_b32 s46, s67, 0xf8"); a("s_lshl_b32 s46, s46, 10"); a(f"s_add_u32 s46, s46, {XFL}")
    a("s_waitcnt vmcnt(14)")
    for c in range(8):
        t = A2 + c*4; b = 96 + c*2
        a(f"v_lshlrev_b32 v{t}, 16, v{b}"); a(f"v_and_b32 v{t+1}, 0xffff0000, v{b}")
        a(f"v_lshlrev_b32 v{t+2}, 16, v{b+1}"); a(f"v_and_b32 v{t+3}, 0xffff0000, v{b+1}")
    a(f"v_add_u32 v22, {HB}, v16"); a(f"v_mov_b32 v23, {CNT}")
    a("s_cmp_lg_u32 s3, 0")
    a("s_waitcnt vmcnt(8) lgkmcnt(0)")
    a("s_barrier")
    a("s_cbranch_scc1 L_NOPUBA")
    a("s_mov_b64 exec, 255"); a("buffer_store_dword v18, v19, s[32:35], s46 offen sc1"); a("s_mov_b64 exec, -1")
    a.label("L_NOPUBA")
    pf.st2(4,0)
    q = VmQ(a)
    q.issue("st")
    def publish():
        q.wait("st")
        a("s_mov_b64 exec, 1"); a("ds_add_rtn_u32 v24, v23, v18"); a("s_mov_b64 exec, 255")
        a("s_waitcnt lgkmcnt(0)")
        a("v_readfirstlane_b32 s47, v24")
        a("s_cmp_lg_u32 s47, 3"); a("s_cbranch_scc1 L_NOPUB")
        a("buffer_store_dword v18, v19, s[32:35], s46 offen offset:32 sc1")
        a.label("L_NOPUB")
        a("s_mov_b64 exec, -1")
    def hload(v, part=3):
        so = f"s{88 + v - 7}" if v < 15 else "s66"
        if part & 1:
            a(f"buffer_load_dwordx4 {vr(HF + (v % PD)*8, 4)}, v16, s[32:35], {so} offen{P.hsc}")
            q.issue()
        if part & 2:
            a(f"buffer_load_dwordx4 {vr(HF + (v % PD)*8 + 4, 4)}, v16, s[32:35], {so} offen offset:512{P.hsc}")
            q.issue(("h", v))
            if 15 <= v < 55: a("s_add_u32 s45, s45, 1"); a("v_readlane_b32 s66, v25, s45")
    def order(u):
        if u == U - 1: return [(0, 2), (0, 3), (1, 2), (1, 3), (0, 0), (0, 1), (1, 0), (1, 1)]
        return [(kk, t) for kk in range(2) for t in range(4)]
    def reads2(u):
        out = []
        base = ((u >> 1) & 3) * 16384 + (u & 1) * 8192
        for kk, t in order(u):
            for hf in range(2):
                r = f"ds_read_b64_tr_b16 {vr(W2[u & 1] + (kk*4+t)*4 + hf*2, 2)}, v{4+t} offset:{base + kk*2048 + hf*4096}"
                if u % 8 == 0 and u > 0 and hf == 0 and kk == 0: r = f"v_xor_b32 v{4+t}, 0x10000, v{4+t}\n    " + r
                out.append(r)
        return out
    for v in range(7):
        for kk in range(2): a(f"ds_read_b128 {vr(HF + v*8 + kk*4, 4)}, v22 offset:{v*8192 + kk*512}")
    for r in reads2(0): a(r)
    for i in range(32, 64, 2): a(f"v_pk_mov_b32 {vr(A2+i,2)}, 0, 0")
    srd(a, 36, 14, OUT_BYTES)
    def xsend(j):
        a(f"buffer_store_dwordx4 {vr(A2 + 32 + j*4, 4)}, v15, s[32:35], s{46 + j//4} offen offset:{(j%4)*1024} sc1")
    PAT = P.pat.split(",")
    assert len(PAT) == 8 and sum(int(ch) for g in PAT for ch in g if ch.isdigit()) == 16
    def step(u, first=False):
        bar = (u & 1) and u + 1 < U
        if u == PS: publish()
        if bar and ("B" not in P.pat or u < 8): a("s_barrier"); bar = False
        rd = reads2(u + 1) if u + 1 < U else []
        i = 0
        hv = [v for v in range(7, U) if iss[v] == u - 1]
        spread = len(hv) == 1 and u >= 8
        if hv and not spread:
            for v in hv: hload(v)
        if u >= 7: q.wait(("h", u))
        last = None
        for m, (kk, t) in enumerate(order(u)):
            cnt = min(15, 16 - 2*(m+1) + i)
            if last is None or cnt < last: a(f"s_waitcnt lgkmcnt({cnt})"); last = cnt
            acc = vr(A2 + t*16, 16)
            a(f"v_mfma_f32_32x32x16_bf16 {acc}, {vr(W2[u&1]+(kk*4+t)*4, 4)}, {vr(HF + (u % PD)*8 + kk*4, 4)}, {acc}")
            for ch in PAT[m]:
                if ch.isdigit():
                    assert not bar
                    for _ in range(int(ch)):
                        if i < len(rd):
                            if not (P.nord and u >= 8 and (P.nord == 1 or i & 1)): a(rd[i])
                            i += 1; last += 1
                elif ch == "B":
                    if bar: a("s_barrier"); bar = False
                elif ch == "a":
                    if spread: hload(hv[0], 1)
                elif ch == "b":
                    if spread: hload(hv[0], 2)
            if u == U - 1 and m >= 5:
                if m == 5: a("s_nop 5")
                for j in {5: (0, 1, 2), 6: (3, 4, 5), 7: (6, 7)}[m]: xsend(j)
        assert not bar
    for u in range(8): step(u)
    pf.st2(5,0,2)
    a("s_mov_b32 s60, 0")
    a.label("L_LOOP2")
    for u in range(8, 16): step(u)
    if P.prof == 3:
        for k, ix in ((0, 3), (2, 4), (3, 5)):
            a(f"s_cmp_eq_u32 s60, {k}"); a(f"s_cbranch_scc0 L_PSK{k}"); pf.st2(0, 0, ix); a.label(f"L_PSK{k}")
    a("s_add_u32 s60, s60, 1"); a("s_cmp_lt_u32 s60, 5"); a("s_cbranch_scc1 L_LOOP2")
    for v in range(16, 24):
        if ("h", v) in q.tags: q.tags[("h", v + 32)] = q.tags[("h", v)]
    a("v_lshlrev_b32 v15, 4, v2")
    a("s_lshl_b32 s46, s62, 13"); a(f"s_add_u32 s46, s46, {XCH}"); a("s_add_u32 s47, s46, 4096")
    a("s_xor_b32 s48, s46, %d" % (8*4*8192)); a("s_add_u32 s49, s48, 4096")
    a("s_xor_b32 s50, s63, 8192")
    a("v_mov_b32 v3, 0"); a("v_mov_b32 v18, 1")
    seq = [(48, kk, t) for kk in range(2) for t in (2, 3, 0, 1)] if False else [(48, kk, t) for kk in range(2) for t in range(4)]
    seq += [(u, kk, t) for u in range(49, 56) for kk in range(2) for t in (2, 3)]
    nsend = len(seq)
    seq += [(u, kk, t) for u in range(49, 56) for kk in range(2) for t in (0, 1)]
    stage_ok = 24
    pend = []
    TP = [0, 3, 3, 2, 0, 3, 3, 2]
    flagged = False
    for g in range(8):
        grp = seq[g*8:(g+1)*8]; nxtg = seq[(g+1)*8:(g+2)*8]
        rd = []
        for m, (u, kk, t) in enumerate(nxtg):
            base = ((u >> 1) & 3) * 16384 + (u & 1) * 8192
            for hf in range(2):
                rd.append((u >> 1, f"ds_read_b64_tr_b16 {vr(W2[(g+1) & 1] + m*4 + hf*2, 2)}, v{4+t} offset:{base + kk*2048 + hf*4096}"))
        i = 0; last = None
        for m, (u, kk, t) in enumerate(grp):
            n = g*8 + m
            if n == 64 - P.fl:
                assert not pend
                a("s_waitcnt vmcnt(0)"); pf.st2(0,5)
                a("buffer_store_dword v18, v3, s[32:35], s50 offen sc1"); flagged = True
            q.wait(("h", u))
            cnt = min(15, 16 - 2*(m+1) + i)
            if last is None or cnt < last: a(f"s_waitcnt lgkmcnt({cnt})"); last = cnt
            acc = vr(A2 + t*16, 16)
            a(f"v_mfma_f32_32x32x16_bf16 {acc}, {vr(W2[g&1]+m*4, 4)}, {vr(HF + (u % PD)*8 + kk*4, 4)}, {acc}")
            if g == 0 and m == 0: hload(55, 1)
            if g == 0 and m == 4: hload(55, 2)
            if n == nsend + 2: pend = list(range(8)); a("s_nop 3")
            if pend:
                for _ in range(2 if TP[m] == 0 else 1):
                    if pend: xsend(pend.pop(0)); q.issue()
            nx = [st for st, _ in rd[i:i + TP[m] + (TP[m+1] if TP[m] == 0 else 0)]]
            while nx and max(nx) > stage_ok: a("s_barrier"); stage_ok += 1
            for _ in range(TP[m]):
                if i < len(rd): a(rd[i][1]); i += 1; last += 1
        assert i == len(rd)
    assert stage_ok == 27 and not pend
    pf.st2(6,4,6)
    a("s_lshl_b32 s42, s20, 7"); a("s_lshl_b32 s43, s3, 5"); a("s_add_u32 s42, s42, s43")
    a("s_lshl_b32 s42, s42, 11"); a("s_add_u32 s42, s42, s54")
    if P.otr:
        a("v_and_b32 v16, 31, v2"); a("v_and_b32 v24, 7, v2"); a("v_xor_b32 v24, v24, v17"); a("v_lshlrev_b32 v24, 4, v24"); a("v_lshl_add_u32 v24, v16, 7, v24")
        a("s_lshl_b32 s43, s3, 12"); a("s_add_u32 s43, s43, 131072"); a("v_add_u32 v20, s43, v24")
        for g in range(1, 4): a(f"v_xor_b32 v{20+g}, {g*32}, v20")
        a("v_add_u32 v24, s43, v15")
        a("v_lshrrev_b32 v16, 3, v2"); a("v_and_b32 v19, 7, v2"); a("v_xor_b32 v19, v19, v16"); a("v_lshlrev_b32 v19, 4, v19"); a("v_lshl_add_u32 v16, v16, 11, v19")
        for g in range(1, 4): a(f"s_add_u32 s{42+g}, s42, {g*8*2048}")
    else:
        a("v_and_b32 v16, 31, v2"); a("v_lshlrev_b32 v16, 11, v16"); a("v_lshl_add_u32 v16, v17, 4, v16")
    if not flagged:
        a("s_waitcnt vmcnt(0)")
        pf.st2(0,5)
        a("buffer_store_dword v18, v3, s[32:35], s50 offen sc1")
    a(f"s_mov_b32 s51, {SPIN}")
    a.label("L_XPOLL")
    a("buffer_load_dword v19, v3, s[32:35], s63 offen sc1")
    a("s_sub_u32 s51, s51, 1")
    a("s_waitcnt vmcnt(0)")
    a("v_readfirstlane_b32 s52, v19")
    a("s_cmp_eq_u32 s52, 1"); a("s_cbranch_scc1 L_XDONE")
    a("s_cmp_lg_u32 s51, 0"); a("s_cbranch_scc1 L_XPOLL")
    a.label("L_XDONE")
    pf.st2(0,6)
    for nt in range(8):
        a(f"buffer_load_dwordx4 {vr(HF + nt*4, 4)}, v15, s[32:35], s{48 + nt//4} offen offset:{(nt%4)*1024} sc1")
    for g in range(4):
        t = A2 + g*8; p = HF + g*8
        a(f"s_waitcnt vmcnt({6 - 2*g if P.otr else 6 - g})")
        for r in (0, 2, 4, 6): a(f"v_pk_add_f32 {vr(t+r,2)}, {vr(t+r,2)}, {vr(p+r,2)}")
        for r in range(4): a(f"v_cvt_pk_bf16_f32 v{p+r}, v{t+2*r}, v{t+2*r+1}")
        a("s_nop 1")
        a(f"v_permlane32_swap_b32 v{p}, v{p+2}"); a(f"v_permlane32_swap_b32 v{p+1}, v{p+3}")
        if P.otr: a(f"ds_write_b128 v{20+g}, {vr(p,4)}")
        else: a(f"buffer_store_dwordx4 {vr(p,4)}, v16, s[36:39], s42 offen offset:{g*32}{P.osc}")
    if P.otr:
        a("s_waitcnt lgkmcnt(0)")
        for g in range(4): a(f"ds_read_b128 {vr(HF + g*4, 4)}, v24 offset:{g*1024}")
        for g in range(4):
            a(f"s_waitcnt lgkmcnt({3-g})")
            a(f"buffer_store_dwordx4 {vr(HF + g*4, 4)}, v16, s[36:39], s{42 + g} offen{P.osc}")
    pf.dump()
    a.label("L_END")
    a("s_endpgm")
    return dict(vgpr=240, lds=163840, block=512)

def main():
    ap = argparse.ArgumentParser()
    ap.add_argument("-o", default="f.s")
    ap.add_argument("--rot1", type=int, default=3)
    ap.add_argument("--t1", default="")
    ap.add_argument("--t2", default="14:0,14:1,15:2,15:3")
    ap.add_argument("--t2split", type=int, default=1)
    ap.add_argument("--l1", type=int, default=3)
    ap.add_argument("--un1", type=int, default=2)
    ap.add_argument("--mark", type=int, default=2)
    ap.add_argument("--nr", type=int, default=0)
    ap.add_argument("--prof", type=int, default=0)
    ap.add_argument("--noh", type=int, default=0)
    ap.add_argument("--otr", type=int, default=0)
    ap.add_argument("--osc", default="")
    ap.add_argument("--wpre", type=int, default=6)
    ap.add_argument("--fl", type=int, default=8)
    ap.add_argument("--st", default="")
    ap.add_argument("--sts", type=int, default=128)
    ap.add_argument("--pfi", type=int, default=1)
    ap.add_argument("--warmh", type=int, default=0)
    ap.add_argument("--wsc", default=" sc1")
    ap.add_argument("--ps", type=int, default=5)
    ap.add_argument("--scr", type=int, default=0)
    ap.add_argument("--pat", default="aB,3,3,2,b,3,3,2")
    ap.add_argument("--nord", type=int, default=0)
    ap.add_argument("--hpos", type=int, default=0)
    ap.add_argument("--hsc", default="sc1")
    P = ap.parse_args()
    if P.hsc: P.hsc = " " + P.hsc
    if P.osc: P.osc = " " + P.osc.replace("+", " ")
    a = Asm()
    k = gen(a, P)
    hdr = ["; fused MLP: out = gelu(x@w1+b1)@w2+b2 ; h handed between workgroups through d_ws with per-producer flags in d_debug",
           f"; @launch grid=(256,1,1) block=({k['block']},1,1) lds={k['lds']}",
           '.amdgcn_target "amdgcn-amd-amdhsa--gfx950"', ".text", f".globl {KN}"]
    tail = ['.section .rodata,"a"', ".p2align 6", f".amdhsa_kernel {KN}",
            f"  .amdhsa_next_free_vgpr {k['vgpr']}", "  .amdhsa_next_free_sgpr 102",
            f"  .amdhsa_accum_offset {k['vgpr']}", "  .amdhsa_group_segment_fixed_size 0",
            "  .amdhsa_kernarg_size 64", "  .amdhsa_user_sgpr_count 2",
            "  .amdhsa_user_sgpr_kernarg_segment_ptr 1", "  .amdhsa_system_sgpr_workgroup_id_x 1",
            ".end_amdhsa_kernel"]
    open(P.o, "w").write("\n".join(hdr) + "\n" + a.text() + "\n".join(tail) + "\n")

if __name__ == "__main__":
    main()
```

```python
import sys, argparse, struct
from gen import Asm, vr, sr, srd, VmQ, f32, S, D, F, X_BYTES, W1_BYTES, W2_BYTES, H_BYTES, OUT_BYTES

KN = "standalone__dense_activation_gelu__prompt_kernel"
WS_SZ = 64 << 20
XCH = 32 << 20
XFL = 48 << 20
PROF_BASE = 64 << 20

class Prof:
    def __init__(self, a, on):
        self.a = a; self.on = on
    def st2(self, i1, i2, i3=0):
        i = i1 if self.on == 1 else i2 if self.on == 2 else i3
        if self.on and i: self.a(f"s_memtime s[{70+2*i}:{71+2*i}]")
    def stamp(self, i):
        if self.on: self.a(f"s_memtime s[{70+2*i}:{71+2*i}]")
    def rt(self, i):
        if self.on: self.a(f"s_memrealtime s[{70+2*i}:{71+2*i}]")
    def dump(self):
        if not self.on: return
        a = self.a
        a("s_mov_b64 exec, -1")
        a("s_waitcnt vmcnt(0)")
        a("s_memtime s[84:85]"); a("s_memrealtime s[86:87]")
        a("s_waitcnt lgkmcnt(0)")
        a("s_mov_b32 s92, s18"); a("s_and_b32 s93, s19, 0xffff"); a("s_mov_b32 s94, 0x10000000"); a("s_mov_b32 s95, 0x20000")
        a("s_lshl_b32 s90, s2, 4"); a("s_add_u32 s90, s90, s3"); a("s_lshl_b32 s90, s90, 6")
        a(f"s_add_u32 s90, s90, {PROF_BASE}")
        a("v_mov_b32 v1, 0")
        for i in range(9):
            a(f"v_mov_b32 v0, s{70+2*i}")
            a(f"buffer_store_dword v0, v1, s[92:95], s90 offen offset:{4*i}")
        a("s_waitcnt vmcnt(0)")

def gen(a, P):
    REG = 49152
    NST1 = 16
    NST2 = 28; NB2 = 8; PD = 8; U = 56
    SPIN = 40000
    HB = 98304; CNT = 160000; PS = P.ps
    a.raw(".p2align 8"); a.raw(f".type {KN},@function"); a.label(KN)
    a("s_cmp_ge_u32 s2, 256"); a("s_cbranch_scc1 L_END")
    if P.scr: a("s_lshl_b32 s22, s2, 3"); a("s_lshr_b32 s2, s2, 5"); a("s_or_b32 s2, s2, s22"); a("s_and_b32 s2, s2, 255")
    pf = Prof(a, P.prof)
    pf.rt(0); pf.stamp(1)
    a("s_load_dwordx8 s[4:11], s[0:1], 0")
    a("s_load_dwordx8 s[12:19], s[0:1], 32")
    a("v_lshrrev_b32 v1, 6, v0"); a("v_and_b32 v2, 63, v0"); a("v_readfirstlane_b32 s3, v1")
    a("s_and_b32 s22, s2, 7"); a("s_lshr_b32 s23, s2, 3")
    a("s_and_b32 s20, s22, 1"); a("s_lshl_b32 s20, s20, 3"); a("s_and_b32 s21, s23, 7"); a("s_add_u32 s20, s20, s21")
    a("s_lshr_b32 s21, s22, 1"); a("s_lshl_b32 s21, s21, 2"); a("s_lshr_b32 s40, s23, 3"); a("s_add_u32 s21, s21, s40")
    if P.prio < 0: a(f"s_setprio {-P.prio}")
    a("s_cmp_lt_u32 s3, 4"); a("s_cbranch_scc1 L_COMP")
    if P.prio: a(f"s_setprio {max(P.prio, 0)}")
    if P.rot1 == 0: a("s_mov_b32 s41, 0")
    elif P.rot1 == 1: a("s_add_u32 s41, s20, s21"); a("s_and_b32 s41, s41, 15")
    else:
        a("s_lshr_b32 s41, s22, 1"); a("s_lshl_b32 s41, s41, 2"); a("s_lshl_b32 s42, s22, 3"); a("s_add_u32 s41, s41, s42")
        if P.rot1 == 3: a("s_add_u32 s42, s20, s21"); a("s_and_b32 s42, s42, 1"); a("s_lshl_b32 s42, s42, 1"); a("s_add_u32 s41, s41, s42")
        if P.rot1 >= 10: a("s_add_u32 s42, s20, s21"); a(f"s_and_b32 s42, s42, {P.rot1 // 10}"); a(f"s_mul_i32 s42, s42, {P.rot1 % 10}"); a("s_add_u32 s41, s41, s42")
        a("s_and_b32 s41, s41, 15")
    a("s_and_b32 s40, s3, 1")
    def table(dst, t0, sh):
        A, Q, J, Pp, B = [f"v{t0+i}" for i in range(5)]
        a(f"v_subrev_u32 {A}, 7, v2"); a(f"v_mul_u32_u24 {Q}, 43, {A}"); a(f"v_lshrrev_b32 {Q}, 7, {Q}")
        a(f"v_mul_u32_u24 {Pp}, 3, {Q}"); a(f"v_sub_u32 {Pp}, {A}, {Pp}")
        a(f"v_subrev_u32 {B}, 28, v2"); a(f"v_lshrrev_b32 {J}, 2, {B}"); a(f"v_and_b32 {B}, 3, {B}"); a(f"v_add_u32 {B}, 3, {B}")
        a("v_cmp_gt_u32 vcc, 28, v2")
        a(f"v_cndmask_b32 {J}, {J}, {Q}, vcc"); a(f"v_cndmask_b32 {Pp}, {B}, {Pp}, vcc"); a(f"v_add_u32 {J}, 1, {J}")
        a("v_cmp_gt_u32 vcc, 7, v2")
        a(f"v_cndmask_b32 {J}, {J}, 0, vcc"); a(f"v_cndmask_b32 {Pp}, {Pp}, v2, vcc")
        a(f"v_add_u32 {J}, s21, {J}"); a(f"v_and_b32 {J}, 7, {J}"); a(f"v_mul_u32_u24 {J}, 7, {J}"); a(f"v_add_u32 {J}, {J}, {Pp}")
        a(f"v_lshlrev_b32 v{dst}, {sh}, {J}")
    def fbit(v): return 1 + (v - 7) // 3 if v < 28 else 9 + (v - 28) // 4
    def st_setup():
        a("s_lshr_b32 s68, s22, 2"); a("s_mul_i32 s68, s68, 1792"); a("s_mul_i32 s69, s23, 28"); a("s_add_u32 s68, s68, s69")
        a("s_and_b32 s69, s22, 1"); a("s_mul_i32 s69, s69, 896"); a("s_add_u32 s68, s68, s69")
        a("s_and_b32 s69, s3, 3"); a("s_mul_i32 s69, s69, 7"); a("s_add_u32 s68, s68, s69"); a("s_lshl_b32 s68, s68, 11")
        a("s_bfe_u32 s69, s22, 0x10001"); a("s_lshl_b32 s69, s69, 10"); a("s_add_u32 s68, s68, s69")
        a("s_add_u32 s68, s10, s68"); a("s_addc_u32 s69, s11, 0")
    st_at = [int(x) for x in P.st.split(",")] if P.st else []
    def st_rows(i):
        if st_at and i == min(st_at): st_setup()
        for r, w in enumerate(st_at):
            if w == i:
                for j in range(0, 1024, P.sts): a(f"s_load_dword s96, s[68:69], {r*2048 + j}")
    a("s_cmp_gt_u32 s3, 5"); a("s_cbranch_scc1 L_LOADA")
    a("v_bfe_u32 v4, v2, 2, 2"); a("v_mul_u32_u24 v4, 7168, v4")
    a("v_lshrrev_b32 v3, 4, v2"); a("v_lshl_add_u32 v4, v3, 6, v4")
    a("v_and_b32 v5, 3, v2"); a("v_lshl_add_u32 v4, v5, 4, v4")
    a("s_mul_i32 s44, s21, 448"); a("s_lshl_b32 s45, s40, 8"); a("s_add_u32 s44, s44, s45")
    a("v_add_u32 v8, s44, v4"); a("v_xor_b32 v4, 32, v8")
    for j in range(1, 16): a(f"v_add_u32 v{8+j}, {j*28672}, " + ("v4" if j & 2 else "v8"))
    KS = 64 * 7168
    a(f"s_mul_i32 s41, s41, {KS}")
    a("s_lshl_b32 s42, s40, 10"); a(f"s_add_u32 s42, s42, 16384")
    a("s_lshl_b32 s45, s40, 4"); a("s_lshr_b32 s45, -1, s45"); a("s_mov_b32 exec_hi, s45")
    a("s_waitcnt lgkmcnt(0)")
    srd(a, 24, 6, W1_BYTES)
    q = VmQ(a)
    def sched(txt):
        d = {}
        if txt:
            for it in txt.split(","):
                w, u = it.split(":"); d.setdefault(int(w), []).append(int(u))
        return d
    tsched = sched(P.t1); t2sched = sched(P.t2)
    def touch_setup():
        a("s_cmp_eq_u32 s40, 0")
        a("s_cselect_b32 s32, s4, s6"); a("s_cselect_b32 s33, s5, s7"); a("s_and_b32 s33, s33, 0xffff")
        a(f"s_mov_b32 s34, {X_BYTES}"); a("s_cmp_eq_u32 s40, 1"); a(f"s_cselect_b32 s34, {W1_BYTES}, s34"); a("s_mov_b32 s35, 0x20000")
        a("s_movk_i32 s52, 256"); a(f"s_cselect_b32 s52, {128*7168}, s52")
        a("v_and_b32 v24, 7, v2"); a("v_lshlrev_b32 v24, 11, v24"); a("v_bfe_u32 v25, v2, 3, 1"); a("v_lshl_add_u32 v24, v25, 7, v24")
        a("s_lshl_b32 s50, s2, 14"); a("v_add_u32 v24, s50, v24")
        a("v_min_u32 v25, 27, v2"); a("v_lshlrev_b32 v25, 7, v25")
        a("s_lshr_b32 s50, s2, 1"); a("s_mul_i32 s50, s50, 7168"); a("s_and_b32 s51, s2, 1"); a("s_mul_i32 s51, s51, 3584"); a("s_add_u32 s50, s50, s51")
        a("v_add_u32 v25, s50, v25")
        a("s_cmp_eq_u32 s40, 0"); a("s_cselect_b64 vcc, -1, 0"); a("v_cndmask_b32 v24, v25, v24, vcc")
    def touch(u):
        a(f"s_mul_i32 s50, s52, {u}")
        a(f"buffer_load_dword v26, v24, s[32:35], s50 offen"); q.issue()
    def touch2_setup():
        a("v_bfe_u32 v27, v2, 3, 2"); a("v_and_b32 v25, 7, v2"); a("v_lshlrev_b32 v25, 7, v25"); a("v_lshl_add_u32 v27, v27, 11, v25")
        a("s_lshr_b32 s53, s22, 2"); a(f"s_mul_i32 s53, s53, 1792"); a("s_lshl_b32 s54, s23, 3"); a("s_add_u32 s53, s53, s54")
        a("s_lshl_b32 s54, s40, 2"); a("s_add_u32 s53, s53, s54")
        a("s_and_b32 s54, s22, 1"); a(f"s_mul_i32 s54, s54, 896"); a("s_add_u32 s53, s53, s54"); a("s_lshl_b32 s53, s53, 11")
        a("s_bfe_u32 s54, s22, 0x10001"); a("s_lshl_b32 s54, s54, 10"); a("s_add_u32 s53, s53, s54")
    def touch2(u):
        a(f"s_add_u32 s54, s53, {u*256*2048}")
        a(f"buffer_load_dword v26, v27, s[28:31], s54 offen"); q.issue()
        if P.t2h: a(f"buffer_load_dword v26, v27, s[28:31], s54 offen offset:64"); q.issue()
    def issueB(s):
        for j in range(16):
            a(f"s_add_u32 m0, s42, {((s + 2) % 3) * REG + j*2048}")
            if j == 0: a(f"s_add_u32 s46, s41, {KS}")
            elif j == 1: a(f"s_cmp_eq_u32 s46, {16*KS}")
            else: a("s_nop 0")
            a(f"buffer_load_dwordx4 v{8+j}, s[24:27], s41 offen lds")
            q.issue(("a", s) if j == 15 else None)
            if j == 1: a("s_cselect_b32 s46, 0, s46")
        a("s_mov_b32 s41, s46")
    pf.stamp(2)
    for i in range(16):
        if i >= 2: q.wait(("a", i - 2)); a("s_barrier")
        issueB(i)
        if i == 0:
            srd(a, 28, 10, W2_BYTES)
            if tsched: touch_setup()
        if i == 2 and t2sched: touch2_setup()
        st_rows(i)
        for u in tsched.get(i, []): touch(u)
        for u in t2sched.get(i, []): touch2(u)
    pf.stamp(3)
    a("s_mov_b64 exec, -1")
    a("v_lshrrev_b32 v3, 4, v2")
    a("v_bfe_u32 v4, v2, 1, 3"); a("v_lshlrev_b32 v5, 1, v3"); a("v_xor_b32 v4, v4, v5"); a("v_lshlrev_b32 v4, 5, v4")
    a("v_and_b32 v5, 1, v2"); a("v_lshl_add_u32 v4, v5, 4, v4")
    a("v_lshl_add_u32 v4, v3, 11, v4")
    a("s_lshr_b32 s44, s21, 3"); a(f"s_mul_i32 s44, s44, {1792*2048}")
    a("s_and_b32 s45, s21, 7"); a("s_lshl_b32 s46, s45, 8"); a("s_add_u32 s44, s44, s46")
    a("v_add_u32 v30, s44, v4")
    for j in range(1, 8): a(f"v_add_u32 v{30+j}, {j*8192}, v30")
    a("s_mul_i32 s41, s45, 7"); a("s_add_u32 s41, s41, s40"); a("s_lshl_b32 s41, s41, 16")
    table(29, 40, 16); a("s_mov_b32 s49, s40")
    a("s_lshl_b32 s42, s40, 13")
    a("v_lshlrev_b32 v38, 4, v2"); a("v_add_u32 v38, s42, v38"); a("v_add_u32 v39, 0x10000, v38")
    NR = P.nr
    def issueW(s, loop=False):
        reg = (not loop) and 8 <= s < 8 + NR
        for j in range(8):
            if not reg: a(f"s_add_u32 m0, s42, {(0 if loop else (s % NB2) * 16384) + j*1024}")
            if j == 0: a("s_add_u32 s49, s49, 2")
            elif j == 1: a("v_readlane_b32 s46, v29, s49")
            elif not reg: a("s_nop 0")
            if not loop and q.n - q.done >= 63:
                a("s_waitcnt vmcnt(55)"); q.done = q.n - 55
            if reg: a(f"buffer_load_dwordx4 {vr(40 + (s-8)*32 + j*4, 4)}, v{30+j}, s[28:31], s41 offen")
            else: a(f"buffer_load_dwordx4 v{30+j}, s[28:31], s41 offen lds")
            if not loop: q.issue(("w", s) if j == 7 else None)
        a("s_mov_b32 s41, s46")
    q.wait(("a", 14)); a("s_barrier")
    for s in (0, 1, 2): issueW(s)
    q.wait(("a", 15)); a("s_barrier")
    for u in t2sched.get(16, []): touch2(u)
    for s in range(3, P.wpre): issueW(s)
    a("s_barrier")
    for u in t2sched.get(17, []): touch2(u)
    assert NR == 0
    q.wait(("w", 0))
    pf.stamp(4)
    a("s_barrier")
    pf.stamp(5)
    for s in range(max(3, P.wpre), 6): issueW(s)
    q.wait(("w", 1)); a("s_barrier")
    for s in (6, 7): issueW(s)
    for s in range(1, NR + 1):
        q.wait(("w", s + 1)); a("s_barrier")
        q.wait(("w", s + 7))
        for j in range(8):
            a(f"ds_write_b128 v{38 + ((s-1) >> 2)}, {vr(40 + (s-1)*32 + j*4, 4)} offset:{((s-1) & 3)*16384 + j*1024}")
    a(f"s_add_u32 s42, s42, {NR*16384}")
    a(f"s_mov_b32 s47, {NR + 1}")
    a("s_waitcnt lgkmcnt(0)")
    a.label("L_WLOOP")
    a("s_waitcnt vmcnt(40)"); a("s_barrier")
    issueW(0, True)
    a("s_add_u32 s42, s42, 16384"); a("s_and_b32 s42, s42, 0x1ffff")
    a("s_add_u32 s47, s47, 1"); a("s_cmp_lt_u32 s47, 21"); a("s_cbranch_scc1 L_WLOOP")
    for s in range(21, 27):
        a(f"s_waitcnt vmcnt({(26 - s) * 8})"); a("s_barrier")
    pf.dump(); a("s_endpgm")
    a.label("L_LOADA")
    a("v_lshrrev_b32 v3, 3, v2")
    a("v_and_b32 v4, 7, v2"); a("v_xor_b32 v4, v4, v3"); a("v_lshlrev_b32 v4, 4, v4")
    a("v_lshl_add_u32 v4, v3, 11, v4")
    a("s_lshl_b32 s44, s20, 18"); a("s_lshl_b32 s45, s40, 17"); a("s_add_u32 s44, s44, s45")
    a("v_add_u32 v8, s44, v4")
    for j in range(1, 8): a(f"v_add_u32 v{8+j}, {j*16384}, v8")
    a("s_lshl_b32 s41, s41, 7")
    a("s_lshl_b32 s42, s40, 13")
    a("s_waitcnt lgkmcnt(0)")
    srd(a, 24, 4, X_BYTES)
    q = VmQ(a)
    srd(a, 36, 16, 256)
    srd(a, 56, 18, WS_SZ)
    a("s_lshl_b32 s60, s20, 4"); a("s_add_u32 s61, s60, s21")
    a("s_lshl_b32 s62, s61, 10"); a(f"s_add_u32 s62, s62, {XFL}")
    a("v_lshlrev_b32 v40, 3, v2"); a("s_lshl_b32 s63, s40, 9"); a("s_add_u32 s63, s63, s62")
    a("v_mov_b32 v42, 0"); a("v_mov_b32 v43, 0"); a("v_mov_b32 v44, 1")
    a("buffer_store_dwordx2 v[42:43], v40, s[56:59], s63 offen sc1"); q.issue()
    a(f"v_mov_b32 v41, {CNT}"); a("ds_write_b32 v41, v42"); a("s_waitcnt lgkmcnt(0)")
    if P.warmh:
        a("s_mul_i32 s64, s20, 112"); a("s_mul_i32 s65, s21, 7"); a("s_add_u32 s64, s64, s65"); a("s_lshl_b32 s64, s64, 13")
        a("s_lshl_b32 s65, s40, 11"); a("s_add_u32 s64, s64, s65")
        a("v_lshlrev_b32 v45, 4, v2")
        for i in range(4): a(f"v_mov_b32 v{48+i}, -1")
        a("s_lshl_b32 s66, s61, 15"); a(f"s_add_u32 s66, s66, {XCH}"); a("s_add_u32 s66, s66, s65")
    def issueA(s):
        if P.warmh & 1 and s >= 2:
            for j in range(2):
                a(f"buffer_store_dwordx4 v[48:51], v45, s[56:59], s64 offen offset:{j*1024}{P.wsc}"); q.issue()
            a("s_add_u32 s64, s64, 4096")
        if P.warmh & 2 and 2 <= s < 10:
            for j in range(2):
                a(f"buffer_store_dwordx4 v[48:51], v45, s[56:59], s66 offen offset:{j*1024}{P.wsc}"); q.issue()
            a("s_add_u32 s66, s66, 4096")
        for j in range(8):
            a(f"s_add_u32 m0, s42, {((s + 2) % 3) * REG + j*1024}")
            if j == 0: a("s_add_u32 s46, s41, 128")
            elif j == 1: a("s_and_b32 s46, s46, 2047")
            else: a("s_nop 0")
            a(f"buffer_load_dwordx4 v{8+j}, s[24:27], s41 offen lds")
            q.issue(("a", s) if j == 7 else None)
        a("s_mov_b32 s41, s46")
    pf.stamp(2)
    issueA(0); issueA(1)
    pf.stamp(3)
    for i in range(17):
        if i < 16: q.wait(("a", i))
        a("s_barrier")
        if i + 2 < 16 and i != 0 or i == 0: pass
        nxt = i + 2
        if nxt < 16: issueA(nxt); st_rows(nxt)
    pf.stamp(4)
    a("s_cmp_eq_u32 s40, 1"); a("s_cbranch_scc1 L_AEND")
    a(f"s_mov_b32 s51, {SPIN if P.mark else 1}"); a("s_mov_b32 s52, " + ("16" if P.mark == 2 else "0x01010101"))
    a("v_lshlrev_b32 v3, 2, v2")
    a("s_mov_b64 exec, " + ("1" if P.mark == 2 else "15"))
    a.label("L_MARK")
    a("buffer_load_dword v6, v3, s[36:39], s60 offen sc1")
    a("s_sub_u32 s51, s51, 1")
    a("s_waitcnt vmcnt(0)")
    a(("v_cmp_gt_u32" if P.mark == 2 else "v_cmp_ne_u32") + " vcc, s52, v6")
    a("s_cbranch_vccz L_MARKD")
    a("s_cmp_lg_u32 s51, 0"); a("s_cbranch_scc1 L_MARK")
    a.label("L_MARKD")
    a("s_mov_b64 exec, 0xffff")
    a("s_and_b32 s47, s21, 7"); a("v_sub_u32 v5, s47, v2"); a("v_and_b32 v5, 7, v5"); a("v_lshlrev_b32 v5, 2, v5"); a("v_lshl_add_u32 v5, v2, 10, v5")
    a("s_and_b32 s46, s61, 0xf8"); a("s_lshl_b32 s46, s46, 10"); a(f"s_add_u32 s46, s46, {XFL}")
    a("s_mov_b32 s48, 0")
    a("s_barrier")
    pf.stamp(5)
    np_ = [0]
    def poll(j):
        n = np_[0]; np_[0] += 1
        a(f"s_mov_b32 s51, {SPIN}")
        a.label(f"L_POLL{n}")
        a(f"s_bitcmp1_b32 s48, {j}"); a(f"s_cbranch_scc1 L_POLLD{n}")
        a("buffer_load_dword v6, v3, s[56:59], s62 offen sc1")
        a("s_sub_u32 s51, s51, 1")
        a("s_waitcnt vmcnt(0)")
        a("v_cmp_eq_u32 vcc, 1, v6")
        a("s_mov_b32 s48, vcc_lo")
        a("s_cmp_lg_u32 s51, 0"); a(f"s_cbranch_scc1 L_POLL{n}")
        a.label(f"L_POLLD{n}")
    iss = {}
    for v in range(7, U): iss[v] = max(v - PD, P.l1 - 1)
    have = []
    for s in range(27):
        lim = 2*s + 1 if 2*s + 3 < 8 else 2*s + 2
        for v in range(7, U):
            if iss[v] <= lim and fbit(v) not in have:
                if fbit(v) > 8: assert 2*s + 1 > PS
                have.append(fbit(v)); poll(fbit(v))
                if len(have) == 1: pf.stamp(6)
        if len(have) == 14 and not P.prof: break
        a("s_barrier")
    a.label("L_AEND")
    a("s_waitcnt vmcnt(0) lgkmcnt(0)")
    pf.dump(); a("s_endpgm")
    a.label("L_COMP")
    ACC = 128; XF = [32, 76]; WF = [48, 92]
    if P.pfi:
        a("s_getpc_b64 s[56:57]")
        a.label("L_PC")
        a(f"s_sub_u32 s56, s56, L_PC-{KN}"); a("s_subb_u32 s57, s57, 0")
        a("s_lshl_b32 s58, s23, 10"); a("s_lshl_b32 s59, s3, 8"); a("s_add_u32 s58, s58, s59")
        for c in range(P.pfi):
            a(f"s_min_u32 s59, s58, L_END-{KN}-192")
            a("s_add_u32 s68, s56, s59"); a("s_addc_u32 s69, s57, 0")
            for j in range(4): a(f"s_load_dword s96, s[68:69], {j*64}")
            a("s_add_u32 s58, s58, 32768")
    a("s_and_b32 s40, s3, 1"); a("s_lshr_b32 s41, s3, 1")
    a("v_and_b32 v12, 15, v2"); a("v_lshrrev_b32 v13, 4, v2")
    a("s_mul_i32 s42, s21, 448"); a("s_lshl_b32 s43, s41, 4"); a("s_add_u32 s43, s43, s42")
    a("s_lshl_b32 s44, s41, 6"); a("s_add_u32 s42, s42, s44")
    a("v_lshlrev_b32 v14, 3, v13")
    a("v_and_b32 v17, 32, v2"); a("v_and_b32 v16, 8, v14"); a("v_or_b32 v17, v17, v16")
    a("s_lshl_b32 s62, s20, 4"); a("s_add_u32 s62, s62, s21"); a("s_lshl_b32 s62, s62, 2"); a("s_add_u32 s62, s62, s3")
    a("s_lshr_b32 s63, s62, 2"); a("s_lshl_b32 s63, s63, 3"); a("s_add_u32 s63, s63, s3"); a("s_lshl_b32 s63, s63, 7"); a(f"s_add_u32 s63, s63, {XFL + 128}")
    a("s_waitcnt lgkmcnt(0)")
    srd(a, 28, 8, F * 2)
    for nt in range(7):
        a(f"buffer_load_dwordx2 {vr(XF[1] + nt*2, 2)}, {'v14' if nt < 6 else 'v17'}, s[28:31], {'s42' if nt < 6 else 's43'} offen offset:{64 + (nt>>1)*128 + (nt&1)*32 if nt < 6 else 0}")
    srd(a, 32, 18, WS_SZ)
    a("v_and_b32 v15, 7, v12"); a("v_xor_b32 v15, v15, v13"); a("v_lshlrev_b32 v15, 4, v15"); a("v_lshl_add_u32 v15, v12, 7, v15")
    a("s_lshl_b32 s43, s40, 13"); a(f"s_add_u32 s43, s43, {2*REG}")
    a("v_add_u32 v4, s43, v15"); a("v_xor_b32 v5, 64, v4")
    a("v_lshlrev_b32 v15, 12, v13")
    a("v_bfe_u32 v16, v2, 2, 2"); a("v_lshl_add_u32 v15, v16, 6, v15")
    a("v_and_b32 v16, 3, v2"); a("v_lshl_add_u32 v15, v16, 3, v15")
    a("v_and_b32 v16, 1, v13"); a("v_lshl_add_u32 v15, v16, 5, v15")
    a("s_lshl_b32 s44, s41, 8"); a(f"s_add_u32 s44, s44, {2*REG + 16384}")
    a("v_add_u32 v6, s44, v15"); a("v_xor_b32 v7, 32, v6")
    a("v_and_b32 v16, 2, v2"); a("v_mul_u32_u24 v16, 24, v16"); a("v_xor_b32 v15, v16, v15")
    a("s_lshl_b32 s44, s41, 4"); a(f"s_add_u32 s44, s44, {2*REG + 16384}"); a("v_add_u32 v8, s44, v15")
    table(25, 26, 13)
    a("s_lshr_b32 s45, s21, 3"); a("s_mul_i32 s44, s20, 112"); a("s_mul_i32 s45, s45, 56"); a("s_add_u32 s44, s44, s45"); a("s_lshl_b32 s44, s44, 13")
    a("v_add_u32 v25, s44, v25")
    a(f"s_mov_b32 s61, {2*REG}"); a("s_mov_b32 s60, 0")
    def t3i():
        return ["s_min_u32 s48, s47, s49", "s_and_b32 s48, s48, 15", "s_mul_i32 s48, s48, s46",
                "buffer_load_dword v120, v121, s[24:27], s48 offen"] + (["buffer_load_dword v120, v121, s[24:27], s48 offen offset:64"] if P.t2h else []) + [f"s_add_u32 s47, s47, {P.t3s}"]
    if P.t3 >= 0:
        a("s_cmp_eq_u32 s40, 0")
        a("s_cselect_b32 s24, s4, s6"); a("s_cselect_b32 s25, s5, s7"); a("s_and_b32 s25, s25, 0xffff")
        a(f"s_mov_b32 s26, {X_BYTES}"); a("s_cmp_eq_u32 s40, 1"); a(f"s_cselect_b32 s26, {W1_BYTES}, s26"); a("s_mov_b32 s27, 0x20000")
        a("s_movk_i32 s46, 128"); a(f"s_cselect_b32 s46, {64*7168}, s46")
        a("v_and_b32 v122, 31, v2"); a("v_lshrrev_b32 v123, 5, v2")
        a("v_lshlrev_b32 v121, 11, v122"); a("v_lshl_add_u32 v121, v123, 7, v121")
        a("s_and_b32 s47, s22, 1"); a("s_lshl_b32 s47, s47, 5"); a("s_add_u32 s47, s47, s23"); a("s_lshl_b32 s47, s47, 16"); a("v_add_u32 v121, s47, v121")
        a("v_min_u32 v122, 27, v122"); a("v_lshlrev_b32 v124, 7, v122")
        a("v_cmp_lt_u32 vcc, 13, v122"); a(f"v_mov_b32 v125, {7168 - 1792}"); a("v_cndmask_b32 v125, 0, v125, vcc"); a("v_add_u32 v124, v124, v125")
        a(f"v_mul_u32_u24 v123, {64*7168}, v123"); a("v_add_u32 v124, v124, v123")
        a(f"s_mul_i32 s47, s23, {2*7168}"); a("s_lshr_b32 s48, s22, 1"); a("s_mul_i32 s48, s48, 1792"); a("s_add_u32 s47, s47, s48"); a("v_add_u32 v124, s47, v124")
        a("s_cmp_eq_u32 s40, 0"); a("s_cselect_b64 vcc, -1, 0"); a("v_cndmask_b32 v121, v124, v121, vcc")
        a("s_lshr_b32 s49, s22, 1"); a("s_lshl_b32 s49, s49, 2"); a("s_lshl_b32 s48, s22, 3"); a("s_add_u32 s49, s49, s48"); a("s_and_b32 s49, s49, 15")
        if P.t3s == 4: a("s_lshl_b32 s47, s41, 1"); a("s_add_u32 s47, s47, s49")
        else: a("s_mov_b32 s47, s49")
        a(f"s_add_u32 s47, s47, {P.t3o}"); a("s_add_u32 s49, s49, 14")
        for t in range(P.t3 if not P.t3p else 0):
            for x in t3i(): a(x)
        a(f"s_waitcnt vmcnt({P.t3 * (2 if P.t2h else 1) if not P.t3p else 0})")
    else:
        a("s_waitcnt vmcnt(0)")
    for nt in range(7):
        b = XF[1] + nt*2; t = ACC + nt*16
        a(f"v_lshlrev_b32 v{t}, 16, v{b}"); a(f"v_and_b32 v{t+1}, 0xffff0000, v{b}")
        a(f"v_lshlrev_b32 v{t+2}, 16, v{b+1}"); a(f"v_and_b32 v{t+3}, 0xffff0000, v{b+1}")
        for mt in range(1, 4):
            for r in (0, 2): a(f"v_pk_mov_b32 {vr(t+mt*4+r,2)}, {vr(t+r,2)}, {vr(t+r,2)} op_sel:[0,1]")
    def reads1(ks):
        out = []
        for mt in range(4):
            out.append(f"ds_read_b128 {vr(XF[ks] + mt*4, 4)}, v{4+ks} offset:{mt*2048}")
        for nt in range(7):
            for hf in range(2):
                out.append(f"ds_read_b64_tr_b16 {vr(WF[ks] + nt*4 + hf*2, 2)}, v{8 if nt == 6 else 6 + (nt&1)} offset:{(8*ks+hf)*2048 + (256 + (nt>>1)*512 if nt < 6 else 0)}")
        return out
    srd(a, 36, 16, 256)
    a("v_mov_b32 v18, 1"); a("v_mov_b32 v19, 0"); a("s_lshr_b32 s67, s62, 2")
    a("s_barrier")
    pf.st2(2,0)
    for r in reads1(0): a(r)
    for t in range(P.t3 if P.t3p else 0):
        for x in t3i(): a(x)
    a("s_cmp_lg_u32 s3, 0"); a("s_cbranch_scc1 L_LOOP1")
    if P.mark == 1: a("s_mov_b64 exec, 1"); a("buffer_store_byte v18, v19, s[36:39], s67 offen sc1"); a("s_mov_b64 exec, -1")
    if P.mark == 2: a("s_mov_b64 exec, 1"); a("s_lshl_b32 s68, s20, 4"); a("buffer_atomic_add v18, v19, s[36:39], s68 offen sc1"); a("s_mov_b64 exec, -1")
    a.label("L_LOOP1")
    for fi, fs in enumerate([0, 1] * P.un1):
        a("s_waitcnt lgkmcnt(0)")
        if fs == 1: a("s_barrier")
        rd = reads1(1 - fs)
        if P.t3 >= 0 and P.t3l and fi == 1: rd += ["s_cmp_gt_u32 s47, s49\n    s_cbranch_scc1 L_T3S\n    " + "\n    ".join(t3i()) + "\nL_T3S:"]
        if fs == 0:
            rd += [f"s_add_u32 s64, s61, {REG}", f"s_cmp_eq_u32 s64, {3*REG}", "s_cselect_b32 s64, 0, s64", "s_sub_u32 s65, s64, s61", "s_mov_b32 s61, s64",
                   "v_add_u32 v4, s65, v4", "v_add_u32 v6, s65, v6", "v_add_u32 v7, s65, v7", "v_add_u32 v8, s65, v8", "v_add_u32 v5, s65, v5"]
        else:
            rd += ["s_add_u32 s60, s60, 1", "s_cmp_lt_u32 s60, 16"]
        i = 0
        for nt in range(7):
            for mt in range(4):
                acc = vr(ACC + (nt*4+mt)*4, 4)
                a(f"v_mfma_f32_16x16x32_bf16 {acc}, {vr(WF[fs]+nt*4, 4)}, {vr(XF[fs]+mt*4, 4)}, {acc}")
                if i < len(rd): a(rd[i]); i += 1
        assert i == len(rd)
    a("s_cbranch_scc1 L_LOOP1")
    if P.t3 >= 0: a("s_waitcnt vmcnt(0)")
    pf.st2(3,2)
    c0 = -2.0 * 0.7978845608028654 * 1.4426950408889634
    c1 = c0 * 0.044715
    a(f"s_mov_b32 s46, {f32(c1)}"); a(f"s_mov_b32 s47, {f32(c0)}")
    a("s_mul_i32 s48, s20, 112"); a("s_mul_i32 s49, s21, 7"); a("s_add_u32 s48, s48, s49")
    a("s_lshl_b32 s66, s48, 13")
    a("s_lshl_b32 s49, s40, 12"); a("s_add_u32 s48, s66, s49")
    a("v_lshlrev_b32 v14, 4, v2")
    a("v_and_b32 v15, 32, v2"); a("v_lshl_add_u32 v15, v15, 4, v14"); a("s_lshl_b32 s49, s41, 9"); a("v_add_u32 v15, s49, v15")
    a("s_mov_b32 s50, s48")
    a("s_lshl_b32 s49, s41, 13"); a("s_add_u32 s51, s48, s49"); a("s_add_u32 s51, s51, 8192")
    a("s_add_u32 s52, s51, 16384"); a("s_add_u32 s53, s51, 32768")
    srd(a, 28, 12, D * 2)
    a("s_lshr_b32 s54, s21, 3"); a("s_lshl_b32 s54, s54, 7"); a("s_and_b32 s55, s21, 7"); a("s_lshl_b32 s55, s55, 8"); a("s_add_u32 s54, s54, s55")
    a("v_lshrrev_b32 v16, 5, v2"); a("v_lshlrev_b32 v16, 3, v16")
    a("s_waitcnt lgkmcnt(0)")
    for c in range(8):
        a(f"buffer_load_dwordx2 {vr(96 + c*2, 2)}, v16, s[28:31], s54 offen offset:{c*16}")
    a("s_lshl_b32 s49, s40, 12"); a(f"s_add_u32 s49, s49, {HB}"); a("v_add_u32 v21, s49, v15")
    a("s_lshl_b32 s55, s41, 13"); a("s_add_u32 s49, s49, s55"); a("v_add_u32 v20, s49, v14")
    TMP = 32
    def gelu4(t, dst, tmp):
        for h in range(2):
            x = vr(t + 2*h, 2); u = vr(tmp + 2*h, 2); a(f"v_pk_mul_f32 {u}, {x}, {x}")
        for h in range(2):
            u = vr(tmp + 2*h, 2); a(f"v_pk_fma_f32 {u}, {u}, s[46:47], s[46:47] op_sel:[0,0,1] op_sel_hi:[1,0,1]")
        for h in range(2):
            x = vr(t + 2*h, 2); u = vr(tmp + 2*h, 2); a(f"v_pk_mul_f32 {u}, {u}, {x}")
        for j in range(4): a(f"v_exp_f32 v{tmp+j}, v{tmp+j}")
        for h in range(2):
            u = vr(tmp + 2*h, 2); a(f"v_pk_add_f32 {u}, {u}, 1.0 op_sel_hi:[1,0]")
        for j in range(4): a(f"v_rcp_f32 v{tmp+j}, v{tmp+j}")
        for h in range(2):
            x = vr(t + 2*h, 2); u = vr(tmp + 2*h, 2); a(f"v_pk_mul_f32 {u}, {u}, {x}")
        for h in range(2):
            a(f"v_cvt_pk_bf16_f32 v{dst+h}, v{tmp+2*h}, v{tmp+2*h+1}")
    k = 0
    for i2 in range(2):
        dst = 64 + (k % 8) * 4; k += 1
        gelu4(ACC + (6*4+2*i2)*4, dst, TMP)
        gelu4(ACC + (6*4+2*i2+1)*4, dst + 2, TMP + 4)
        a("s_nop 1")
        a(f"v_permlane32_swap_b32 v{dst}, v{dst+2}"); a(f"v_permlane32_swap_b32 v{dst+1}, v{dst+3}")
        a(f"buffer_store_dwordx4 {vr(dst,4)}, v15, s[32:35], s50 offen offset:{i2*2048} sc1")
        a(f"ds_write_b128 v21, {vr(dst,4)} offset:{i2*2048}")
    for pi in range(3):
        for mt in range(4):
            dst = 64 + (k % 8) * 4; k += 1
            gelu4(ACC + (2*pi*4+mt)*4, dst, TMP)
            gelu4(ACC + ((2*pi+1)*4+mt)*4, dst + 2, TMP + 4)
            a(f"buffer_store_dwordx4 {vr(dst,4)}, v14, s[32:35], s{51+pi} offen offset:{mt*1024} sc1")
            a(f"ds_write_b128 v20, {vr(dst,4)} offset:{8192 + pi*16384 + mt*1024}")
    pf.st2(0,3)
    A2 = 32; W2 = [96, 128]; HF = 160
    a("s_lshr_b32 s40, s21, 3")
    a("s_and_b32 s41, s21, 7")
    a("v_and_b32 v15, 1, v13"); a("v_lshrrev_b32 v17, 1, v13")
    a("s_lshl_b32 s42, s3, 11")
    a("v_lshlrev_b32 v16, 4, v12"); a("v_lshl_add_u32 v16, v15, 10, v16"); a("v_lshl_add_u32 v16, v17, 8, v16"); a("v_add_u32 v16, s42, v16")
    for v in range(7, 15): a(f"v_readlane_b32 s{88 + v - 7}, v25, {v}")
    a("v_readlane_b32 s66, v25, 15"); a("s_mov_b32 s45, 15")
    a("v_lshrrev_b32 v3, 2, v12")
    a("v_lshl_add_u32 v4, v17, 2, v3"); a("v_lshlrev_b32 v4, 8, v4")
    a("v_lshl_add_u32 v3, v3, 1, v15"); a("v_lshl_add_u32 v4, v3, 5, v4")
    a("v_and_b32 v3, 3, v2"); a("v_lshl_add_u32 v4, v3, 3, v4")
    a("s_lshl_b32 s43, s40, 7"); a("v_xor_b32 v4, s43, v4")
    for t in range(1, 4): a(f"v_xor_b32 v{4+t}, {t*64}, v4")
    a("v_sub_u32 v19, s41, v2"); a("v_and_b32 v19, 7, v19"); a("v_lshlrev_b32 v19, 2, v19"); a("v_lshl_add_u32 v19, v2, 10, v19")
    a("s_and_b32 s46, s67, 0xf8"); a("s_lshl_b32 s46, s46, 10"); a(f"s_add_u32 s46, s46, {XFL}")
    a("s_waitcnt vmcnt(14)")
    for c in range(8):
        t = A2 + c*4; b = 96 + c*2
        a(f"v_lshlrev_b32 v{t}, 16, v{b}"); a(f"v_and_b32 v{t+1}, 0xffff0000, v{b}")
        a(f"v_lshlrev_b32 v{t+2}, 16, v{b+1}"); a(f"v_and_b32 v{t+3}, 0xffff0000, v{b+1}")
    a(f"v_add_u32 v22, {HB}, v16"); a(f"v_mov_b32 v23, {CNT}")
    a("s_cmp_lg_u32 s3, 0")
    a("s_waitcnt vmcnt(8) lgkmcnt(0)")
    a("s_barrier")
    a("s_cbranch_scc1 L_NOPUBA")
    a("s_mov_b64 exec, 255"); a("buffer_store_dword v18, v19, s[32:35], s46 offen sc1"); a("s_mov_b64 exec, -1")
    a.label("L_NOPUBA")
    pf.st2(4,0)
    q = VmQ(a)
    q.issue("st")
    def publish():
        q.wait("st")
        a("s_mov_b64 exec, 1"); a("ds_add_rtn_u32 v24, v23, v18"); a("s_mov_b64 exec, 255")
        a("s_waitcnt lgkmcnt(0)")
        a("v_readfirstlane_b32 s47, v24")
        a("s_cmp_lg_u32 s47, 3"); a("s_cbranch_scc1 L_NOPUB")
        a("buffer_store_dword v18, v19, s[32:35], s46 offen offset:32 sc1")
        a.label("L_NOPUB")
        a("s_mov_b64 exec, -1")
    def hload(v, part=3):
        so = f"s{88 + v - 7}" if v < 15 else "s66"
        if part & 1:
            a(f"buffer_load_dwordx4 {vr(HF + (v % PD)*8, 4)}, v16, s[32:35], {so} offen{P.hsc}")
            q.issue()
        if part & 2:
            a(f"buffer_load_dwordx4 {vr(HF + (v % PD)*8 + 4, 4)}, v16, s[32:35], {so} offen offset:512{P.hsc}")
            q.issue(("h", v))
            if 15 <= v < 55: a("s_add_u32 s45, s45, 1"); a("v_readlane_b32 s66, v25, s45")
    def order(u):
        if u == U - 1: return [(0, 2), (0, 3), (1, 2), (1, 3), (0, 0), (0, 1), (1, 0), (1, 1)]
        return [(kk, t) for kk in range(2) for t in range(4)]
    def reads2(u):
        out = []
        base = ((u >> 1) & 3) * 16384 + (u & 1) * 8192
        for kk, t in order(u):
            for hf in range(2):
                r = f"ds_read_b64_tr_b16 {vr(W2[u & 1] + (kk*4+t)*4 + hf*2, 2)}, v{4+t} offset:{base + kk*2048 + hf*4096}"
                if u % 8 == 0 and u > 0 and hf == 0 and kk == 0: r = f"v_xor_b32 v{4+t}, 0x10000, v{4+t}\n    " + r
                out.append(r)
        return out
    for v in range(7):
        for kk in range(2): a(f"ds_read_b128 {vr(HF + v*8 + kk*4, 4)}, v22 offset:{v*8192 + kk*512}")
    for r in reads2(0): a(r)
    for i in range(32, 64, 2): a(f"v_pk_mov_b32 {vr(A2+i,2)}, 0, 0")
    srd(a, 36, 14, OUT_BYTES)
    def xsend(j):
        a(f"buffer_store_dwordx4 {vr(A2 + 32 + j*4, 4)}, v15, s[32:35], s{46 + j//4} offen offset:{(j%4)*1024} sc1")
    PAT = P.pat.split(",")
    assert len(PAT) == 8 and sum(int(ch) for g in PAT for ch in g if ch.isdigit()) == 16
    def step(u, first=False):
        bar = (u & 1) and u + 1 < U
        if u == PS: publish()
        if bar and ("B" not in P.pat or u < 8): a("s_barrier"); bar = False
        rd = reads2(u + 1) if u + 1 < U else []
        i = 0
        hv = [v for v in range(7, U) if iss[v] == u - 1]
        spread = len(hv) == 1 and u >= 8
        if hv and not spread:
            for v in hv: hload(v)
        if u >= 7: q.wait(("h", u))
        last = None
        for m, (kk, t) in enumerate(order(u)):
            cnt = min(15, 16 - 2*(m+1) + i)
            if last is None or cnt < last: a(f"s_waitcnt lgkmcnt({cnt})"); last = cnt
            acc = vr(A2 + t*16, 16)
            a(f"v_mfma_f32_32x32x16_bf16 {acc}, {vr(W2[u&1]+(kk*4+t)*4, 4)}, {vr(HF + (u % PD)*8 + kk*4, 4)}, {acc}")
            for ch in PAT[m]:
                if ch.isdigit():
                    assert not bar
                    for _ in range(int(ch)):
                        if i < len(rd):
                            if not (P.nord and u >= 8 and (P.nord == 1 or i & 1)): a(rd[i])
                            i += 1; last += 1
                elif ch == "B":
                    if bar: a("s_barrier"); bar = False
                elif ch == "a":
                    if spread: hload(hv[0], 1)
                elif ch == "b":
                    if spread: hload(hv[0], 2)
            if u == U - 1 and m >= 5:
                if m == 5: a("s_nop 5")
                for j in {5: (0, 1, 2), 6: (3, 4, 5), 7: (6, 7)}[m]: xsend(j)
        assert not bar
    for u in range(8): step(u)
    pf.st2(5,0,2)
    a("s_mov_b32 s60, 0")
    a.label("L_LOOP2")
    for u in range(8, 16): step(u)
    if P.prof == 3:
        for k, ix in ((0, 3), (2, 4), (3, 5)):
            a(f"s_cmp_eq_u32 s60, {k}"); a(f"s_cbranch_scc0 L_PSK{k}"); pf.st2(0, 0, ix); a.label(f"L_PSK{k}")
    a("s_add_u32 s60, s60, 1"); a("s_cmp_lt_u32 s60, 5"); a("s_cbranch_scc1 L_LOOP2")
    for v in range(16, 24):
        if ("h", v) in q.tags: q.tags[("h", v + 32)] = q.tags[("h", v)]
    a("v_lshlrev_b32 v15, 4, v2")
    a("s_lshl_b32 s46, s62, 13"); a(f"s_add_u32 s46, s46, {XCH}"); a("s_add_u32 s47, s46, 4096")
    a("s_xor_b32 s48, s46, %d" % (8*4*8192)); a("s_add_u32 s49, s48, 4096")
    a("s_xor_b32 s50, s63, 8192")
    a("v_mov_b32 v3, 0"); a("v_mov_b32 v18, 1")
    seq = [(48, kk, t) for kk in range(2) for t in (2, 3, 0, 1)] if False else [(48, kk, t) for kk in range(2) for t in range(4)]
    seq += [(u, kk, t) for u in range(49, 56) for kk in range(2) for t in (2, 3)]
    nsend = len(seq)
    seq += [(u, kk, t) for u in range(49, 56) for kk in range(2) for t in (0, 1)]
    stage_ok = 24
    pend = []
    TP = [0, 3, 3, 2, 0, 3, 3, 2]
    flagged = False
    for g in range(8):
        grp = seq[g*8:(g+1)*8]; nxtg = seq[(g+1)*8:(g+2)*8]
        rd = []
        for m, (u, kk, t) in enumerate(nxtg):
            base = ((u >> 1) & 3) * 16384 + (u & 1) * 8192
            for hf in range(2):
                rd.append((u >> 1, f"ds_read_b64_tr_b16 {vr(W2[(g+1) & 1] + m*4 + hf*2, 2)}, v{4+t} offset:{base + kk*2048 + hf*4096}"))
        i = 0; last = None
        for m, (u, kk, t) in enumerate(grp):
            n = g*8 + m
            if n == 64 - P.fl:
                assert not pend
                a("s_waitcnt vmcnt(0)"); pf.st2(0,5)
                a("buffer_store_dword v18, v3, s[32:35], s50 offen sc1"); flagged = True
            q.wait(("h", u))
            cnt = min(15, 16 - 2*(m+1) + i)
            if last is None or cnt < last: a(f"s_waitcnt lgkmcnt({cnt})"); last = cnt
            acc = vr(A2 + t*16, 16)
            a(f"v_mfma_f32_32x32x16_bf16 {acc}, {vr(W2[g&1]+m*4, 4)}, {vr(HF + (u % PD)*8 + kk*4, 4)}, {acc}")
            if g == 0 and m == 0: hload(55, 1)
            if g == 0 and m == 4: hload(55, 2)
            if n == nsend + 2: pend = list(range(8)); a("s_nop 3")
            if pend:
                for _ in range(2 if TP[m] == 0 else 1):
                    if pend: xsend(pend.pop(0)); q.issue()
            nx = [st for st, _ in rd[i:i + TP[m] + (TP[m+1] if TP[m] == 0 else 0)]]
            while nx and max(nx) > stage_ok: a("s_barrier"); stage_ok += 1
            for _ in range(TP[m]):
                if i < len(rd): a(rd[i][1]); i += 1; last += 1
        assert i == len(rd)
    assert stage_ok == 27 and not pend
    pf.st2(6,4,6)
    a("s_lshl_b32 s42, s20, 7"); a("s_lshl_b32 s43, s3, 5"); a("s_add_u32 s42, s42, s43")
    a("s_lshl_b32 s42, s42, 11"); a("s_add_u32 s42, s42, s54")
    if P.otr:
        a("v_and_b32 v16, 31, v2"); a("v_and_b32 v24, 7, v2"); a("v_xor_b32 v24, v24, v17"); a("v_lshlrev_b32 v24, 4, v24"); a("v_lshl_add_u32 v24, v16, 7, v24")
        a("s_lshl_b32 s43, s3, 12"); a("s_add_u32 s43, s43, 131072"); a("v_add_u32 v20, s43, v24")
        for g in range(1, 4): a(f"v_xor_b32 v{20+g}, {g*32}, v20")
        a("v_add_u32 v24, s43, v15")
        a("v_lshrrev_b32 v16, 3, v2"); a("v_and_b32 v19, 7, v2"); a("v_xor_b32 v19, v19, v16"); a("v_lshlrev_b32 v19, 4, v19"); a("v_lshl_add_u32 v16, v16, 11, v19")
        for g in range(1, 4): a(f"s_add_u32 s{42+g}, s42, {g*8*2048}")
    else:
        a("v_and_b32 v16, 31, v2"); a("v_lshlrev_b32 v16, 11, v16"); a("v_lshl_add_u32 v16, v17, 4, v16")
    if not flagged:
        a("s_waitcnt vmcnt(0)")
        pf.st2(0,5)
        a("buffer_store_dword v18, v3, s[32:35], s50 offen sc1")
    a(f"s_mov_b32 s51, {SPIN}")
    a.label("L_XPOLL")
    a("buffer_load_dword v19, v3, s[32:35], s63 offen sc1")
    a("s_sub_u32 s51, s51, 1")
    a("s_waitcnt vmcnt(0)")
    a("v_readfirstlane_b32 s52, v19")
    a("s_cmp_eq_u32 s52, 1"); a("s_cbranch_scc1 L_XDONE")
    a("s_cmp_lg_u32 s51, 0"); a("s_cbranch_scc1 L_XPOLL")
    a.label("L_XDONE")
    pf.st2(0,6)
    for nt in range(8):
        a(f"buffer_load_dwordx4 {vr(HF + nt*4, 4)}, v15, s[32:35], s{48 + nt//4} offen offset:{(nt%4)*1024} sc1")
    for g in range(4):
        t = A2 + g*8; p = HF + g*8
        a(f"s_waitcnt vmcnt({6 - 2*g if P.otr else 6 - g})")
        for r in (0, 2, 4, 6): a(f"v_pk_add_f32 {vr(t+r,2)}, {vr(t+r,2)}, {vr(p+r,2)}")
        for r in range(4): a(f"v_cvt_pk_bf16_f32 v{p+r}, v{t+2*r}, v{t+2*r+1}")
        a("s_nop 1")
        a(f"v_permlane32_swap_b32 v{p}, v{p+2}"); a(f"v_permlane32_swap_b32 v{p+1}, v{p+3}")
        if P.otr: a(f"ds_write_b128 v{20+g}, {vr(p,4)}")
        else: a(f"buffer_store_dwordx4 {vr(p,4)}, v16, s[36:39], s42 offen offset:{g*32}{P.osc}")
    if P.otr:
        a("s_waitcnt lgkmcnt(0)")
        for g in range(4): a(f"ds_read_b128 {vr(HF + g*4, 4)}, v24 offset:{g*1024}")
        for g in range(4):
            a(f"s_waitcnt lgkmcnt({3-g})")
            a(f"buffer_store_dwordx4 {vr(HF + g*4, 4)}, v16, s[36:39], s{42 + g} offen{P.osc}")
    pf.dump()
    a.label("L_END")
    a("s_endpgm")
    return dict(vgpr=240, lds=163840, block=512)

def main():
    ap = argparse.ArgumentParser()
    ap.add_argument("-o", default="f.s")
    ap.add_argument("--rot1", type=int, default=3)
    ap.add_argument("--t1", default="")
    ap.add_argument("--t2", default="2:0,5:1,8:2,11:3")
    ap.add_argument("--t3", type=int, default=-1)
    ap.add_argument("--prio", type=int, default=0)
    ap.add_argument("--t3p", type=int, default=0)
    ap.add_argument("--t2h", type=int, default=0)
    ap.add_argument("--t3o", type=int, default=4)
    ap.add_argument("--t3s", type=int, default=4)
    ap.add_argument("--t3l", type=int, default=0)
    ap.add_argument("--t2split", type=int, default=1)
    ap.add_argument("--l1", type=int, default=3)
    ap.add_argument("--un1", type=int, default=2)
    ap.add_argument("--mark", type=int, default=2)
    ap.add_argument("--nr", type=int, default=0)
    ap.add_argument("--prof", type=int, default=0)
    ap.add_argument("--noh", type=int, default=0)
    ap.add_argument("--otr", type=int, default=0)
    ap.add_argument("--osc", default="")
    ap.add_argument("--wpre", type=int, default=6)
    ap.add_argument("--fl", type=int, default=8)
    ap.add_argument("--st", default="")
    ap.add_argument("--sts", type=int, default=128)
    ap.add_argument("--pfi", type=int, default=1)
    ap.add_argument("--warmh", type=int, default=0)
    ap.add_argument("--wsc", default=" sc1")
    ap.add_argument("--ps", type=int, default=5)
    ap.add_argument("--scr", type=int, default=0)
    ap.add_argument("--pat", default="aB,3,3,2,b,3,3,2")
    ap.add_argument("--nord", type=int, default=0)
    ap.add_argument("--hpos", type=int, default=0)
    ap.add_argument("--hsc", default="sc1")
    P = ap.parse_args()
    if P.hsc: P.hsc = " " + P.hsc
    if P.osc: P.osc = " " + P.osc.replace("+", " ")
    a = Asm()
    k = gen(a, P)
    hdr = ["; fused MLP: out = gelu(x@w1+b1)@w2+b2 ; h handed between workgroups through d_ws with per-producer flags in d_debug",
           f"; @launch grid=(256,1,1) block=({k['block']},1,1) lds={k['lds']}",
           '.amdgcn_target "amdgcn-amd-amdhsa--gfx950"', ".text", f".globl {KN}"]
    tail = ['.section .rodata,"a"', ".p2align 6", f".amdhsa_kernel {KN}",
            f"  .amdhsa_next_free_vgpr {k['vgpr']}", "  .amdhsa_next_free_sgpr 102",
            f"  .amdhsa_accum_offset {k['vgpr']}", "  .amdhsa_group_segment_fixed_size 0",
            "  .amdhsa_kernarg_size 64", "  .amdhsa_user_sgpr_count 2",
            "  .amdhsa_user_sgpr_kernarg_segment_ptr 1", "  .amdhsa_system_sgpr_workgroup_id_x 1",
            ".end_amdhsa_kernel"]
    open(P.o, "w").write("\n".join(hdr) + "\n" + a.text() + "\n".join(tail) + "\n")

if __name__ == "__main__":
    main()
```
